```python
import torch

def _softmax(x, axis=-1):
    return torch.softmax(x, dim=axis)
def _gelu(x):
    return torch.nn.functional.gelu(x, approximate="tanh")
def _silu(x):
    return torch.nn.functional.silu(x)
def _sigmoid(x):
    return torch.sigmoid(x)
def _layernorm(x, axis=-1, eps=1e-5):
    m = x.mean(dim=axis, keepdim=True)
    v = x.var(dim=axis, keepdim=True, unbiased=False)
    return (x - m) / torch.sqrt(v + eps)
def _scatter_add(tgt, idx, src, axis=0):
    return tgt.clone().index_add_(axis, idx, src)
def _segment_sum(src, seg, n):
    out = torch.zeros((n,) + src.shape[1:], dtype=src.dtype)
    return out.index_add_(0, seg, src)
def _pad(x, pw):
    flat = tuple(v for pair in reversed(pw) for v in pair)
    return torch.nn.functional.pad(x, flat)

kernel_name = 'recurrent_scan__linear_kernel_hedgehog__mixer_token_mlp__prompt'

def setup_inputs():

    _w = (lambda a: (lambda t: t.to(torch.bfloat16) if t.is_floating_point() else t)(torch.as_tensor(a)))
    def _A_setup():
        B, S, D, H = 1, 2048, 512, 32
        Dh = D // H
        return {
            "x": _w((lambda *s: torch.randn(*s, dtype=torch.bfloat16) * 0.05)(B, S, D)),
            "wqkv": _w((lambda *s: torch.randn(*s, dtype=torch.bfloat16) * 0.4)(D, 3 * D)),
            "w_phi": _w((lambda *s: torch.randn(*s, dtype=torch.bfloat16) * 0.4)(H, Dh, Dh) * (Dh ** -0.5)),
            "wo": _w((lambda *s: torch.randn(*s, dtype=torch.bfloat16) * 0.2)(D, D)),
        }
    _A_in = _A_setup()

    def _B_setup():
        B, S, D, F = 1, 2048, 512, 1376
        return {
            "x": _w((lambda *s: torch.randn(*s, dtype=torch.bfloat16) * 0.05)(B, S, D)),
            "w1": _w((lambda *s: torch.randn(*s, dtype=torch.bfloat16) * 0.4)(S, F) * (S ** -0.5)),
            "b1": _w((lambda *s: torch.randn(*s, dtype=torch.bfloat16) * 3.2)(F) * 0.02),
            "w2": _w((lambda *s: torch.randn(*s, dtype=torch.bfloat16) * 0.4)(F, S) * (F ** -0.5)),
            "b2": _w((lambda *s: torch.randn(*s, dtype=torch.bfloat16) * 0.8)(S) * 0.02),
        }
    _B_in = _B_setup()

    return {
        "A_x": _A_in["x"],
        "A_wqkv": _A_in["wqkv"],
        "A_w_phi": _A_in["w_phi"],
        "A_wo": _A_in["wo"],
        "B_x": _B_in["x"],
        "B_w1": _B_in["w1"],
        "B_b1": _B_in["b1"],
        "B_w2": _B_in["w2"],
        "B_b2": _B_in["b2"],
    }

def reference(A_x, A_wqkv, A_w_phi, A_wo, B_x, B_w1, B_b1, B_w2, B_b2):
    def _A_ref(x, wqkv, w_phi, wo):
        B, S, D = x.shape
        H = 32; Dh = D // H
        qkv = (lambda x, *d: x.permute(*d))((x @ wqkv).reshape(B, S, 3, H, Dh), 2, 0, 3, 1, 4)
        q, k, v = qkv[0], qkv[1], qkv[2]
        pq = torch.einsum("bhsd,hdf->bhsf", q, w_phi)
        pk = torch.einsum("bhsd,hdf->bhsf", k, w_phi)
        phi_q = torch.concatenate([_softmax(pq, axis=-1), _softmax(-pq, axis=-1)], axis=-1)
        phi_k = torch.concatenate([_softmax(pk, axis=-1), _softmax(-pk, axis=-1)], axis=-1)
        kv = torch.einsum("bhsf,bhsd->bhfd", phi_k, v)
        z  = torch.einsum("bhsf->bhf", phi_k)
        num = torch.einsum("bhqf,bhfd->bhqd", phi_q, kv)
        den = torch.einsum("bhqf,bhf->bhq", phi_q, z)[..., None] + 1e-6
        o = num / den
        return (lambda x, *d: x.permute(*d))(o, 0, 2, 1, 3).reshape(B, S, D) @ wo

    def _B_ref(x, w1, b1, w2, b2):
        B, S, D = x.shape
        h = _layernorm(x, axis=-1)
        u = torch.einsum("bsd,sf->bdf", h, w1) + b1
        u = _gelu(u)
        y = torch.einsum("bdf,fs->bds", u, w2) + b2
        return (lambda x, *d: x.permute(*d))(y, 0, 2, 1)

    x = A_x
    xn = _layernorm(x, axis=-1)
    s = _A_ref(xn, A_wqkv, A_w_phi, A_wo)
    g = _silu(_B_ref(xn, B_w1, B_b1, B_w2, B_b2))
    return x + s * g
```

```python
import re

TRANS = ("v_exp_f32", "v_log_f32", "v_rcp_f32", "v_rsq_f32", "v_sqrt_f32", "v_sin_f32", "v_cos_f32", "v_rcp_iflag_f32")

def parse_reg(tok):
    t = tok.strip()
    t = re.sub(r"^(neg|abs)\((.*)\)$", r"\2", t)
    t = t.lstrip("-").strip("|")
    t = re.sub(r"^(neg|abs)\((.*)\)$", r"\2", t)
    m = re.fullmatch(r"([vas])(\d+)", t)
    if m: return {(m.group(1), int(m.group(2)))}
    m = re.fullmatch(r"([vas])\[(\d+):(\d+)\]", t)
    if m: return {(m.group(1), i) for i in range(int(m.group(2)), int(m.group(3)) + 1)}
    if t in ("vcc", "vcc_lo", "vcc_hi"): return {("vcc", 0)}
    if t in ("exec", "exec_lo", "exec_hi"): return {("exec", 0)}
    if t == "m0": return {("m0", 0)}
    return set()

class Ins:
    __slots__ = ("text", "op", "kind", "dst", "src", "srcC", "srcAB", "passes", "wide_store", "states", "dpp", "lds", "sconst")

def analyze(text):
    I = Ins(); I.text = text
    body = text.split(";")[0].strip()
    parts = body.split(None, 1)
    op = parts[0]; I.op = op
    rest = parts[1] if len(parts) > 1 else ""
    ops = [o.strip() for o in rest.split(",")] if rest else []
    mods = ""
    if ops:
        joined = []
        depth = 0; cur = ""
        for ch in rest:
            if ch == "[": depth += 1
            if ch == "]": depth -= 1
            if ch == "," and depth == 0:
                joined.append(cur.strip()); cur = ""
            else: cur += ch
        joined.append(cur.strip())
        ops = joined
        last = ops[-1].split(None, 1)
        ops[-1] = last[0]
        mods = last[1] if len(last) > 1 else ""
    regs = [parse_reg(o) for o in ops]
    I.dst = set(); I.src = set(); I.srcC = set(); I.srcAB = set(); I.passes = 0; I.wide_store = set(); I.states = 1
    I.dpp = ("_dpp" in op) or ("row_" in mods) or ("quad_perm" in mods)
    I.lds = False
    allr = lambda a: set().union(*a) if a else set()
    if op.startswith("v_mfma"):
        I.kind = "mfma"; I.dst = regs[0]; I.srcAB = regs[1] | regs[2]; I.srcC = regs[3] if len(regs) > 3 else set()
        I.src = I.srcAB | I.srcC
        I.passes = 8 if "32x32" in op else 4
    elif op.startswith("v_"):
        I.kind = "valu"
        base = op.replace("_e32", "").replace("_e64", "").replace("_dpp", "").replace("_sdwa", "")
        if base in TRANS: I.kind = "trans"
        if "permlane" in op and "swap" in op:
            I.dst = regs[0] | regs[1]; I.src = regs[0] | regs[1]; I.kind = "permlane"
        elif base in ("v_add_co_u32", "v_sub_co_u32", "v_addc_co_u32", "v_subb_co_u32", "v_div_scale_f32", "v_mad_u64_u32"):
            I.dst = regs[0] | regs[1]; I.src = allr(regs[2:])
        elif op == "v_nop":
            pass
        else:
            I.dst = regs[0]; I.src = allr(regs[1:])
            if base.startswith(("v_fmac", "v_dot2c", "v_pk_fmac", "v_mac")) or "sdwa" in op or I.dpp or base == "v_writelane_b32": I.src |= regs[0]
        if base in ("v_readfirstlane_b32", "v_readlane_b32"): I.kind = "readlane"
    elif op.startswith("ds_"):
        I.kind = "ds"
        if op.startswith(("ds_read", "ds_bpermute", "ds_permute", "ds_swizzle")):
            I.dst = regs[0]; I.src = allr(regs[1:])
        else:
            I.src = allr(regs)
    elif op.startswith(("buffer_", "global_", "flat_")):
        I.kind = "vmem"
        islds = bool(re.search(r"\blds\b", mods)) or "_lds_" in op
        I.lds = islds
        if "load" in op and not islds:
            I.dst = regs[0]; I.src = allr(regs[1:])
            if "d16" in op: I.src |= regs[0]
        else:
            I.src = allr(regs)
            if islds: I.src |= {("m0", 0)}
            if "store" in op and ("x4" in op or "x3" in op):
                I.wide_store = regs[0] if op.startswith("buffer_") else regs[1]
            if "atomic" in op and "sc0" in mods:
                I.dst = regs[0]
    elif op.startswith("s_"):
        I.kind = "salu"
        if op == "s_nop":
            I.states = int(ops[0], 0) + 1
        elif op.startswith(("s_cmp", "s_cbranch", "s_branch", "s_waitcnt", "s_barrier", "s_endpgm", "s_setprio", "s_sleep", "s_bitcmp")):
            I.src = allr(regs)
        elif op.startswith(("s_load", "s_memtime", "s_memrealtime", "s_buffer_load")):
            I.kind = "smem"; I.dst = regs[0]; I.src = allr(regs[1:])
        else:
            I.dst = regs[0] if regs else set(); I.src = allr(regs[1:])
            if "saveexec" in op: I.dst |= {("exec", 0)}
    else:
        raise ValueError("unknown instr: " + text)
    return I

VALUK = ("valu", "trans", "permlane", "readlane")
def isv(r): return r[0] in ("v", "a")
def issg(r): return r[0] in ("s", "vcc")

def need(p, c):
    n = 0
    if p.kind in VALUK:
        vd = {r for r in p.dst if isv(r)}
        sd = {r for r in p.dst if issg(r)}
        if c.kind == "mfma" and vd & c.src: n = max(n, 2)
        if c.kind == "permlane" and vd & c.src: n = max(n, 2)
        if c.kind in VALUK and c.dpp and vd & c.src: n = max(n, 2)
        if c.kind == "readlane" and vd & c.src: n = max(n, 1)
        if p.kind == "trans" and c.kind in VALUK + ("mfma",) and vd & c.src: n = max(n, 1)
        if ("sdwa" in p.op or "op_sel" in p.text) and c.kind in VALUK and vd & (c.src | c.dst): n = max(n, 1)
        if sd:
            if c.kind in VALUK and sd & c.src: n = max(n, 4 if c.kind == "readlane" else 2)
            if c.kind == "vmem" and sd & c.src: n = max(n, 5)
            if c.kind in ("salu", "smem") and sd & c.src: n = max(n, 1)
        if ("exec", 0) in p.dst:
            n = max(n, 5)
    if p.kind == "mfma":
        k = {4: 8, 8: 12}[p.passes]
        if c.kind == "mfma":
            if p.dst & c.srcAB: n = max(n, k)
            if p.dst & c.srcC:
                if not (p.dst == c.srcC and p.passes == c.passes): n = max(n, k - 2)
            elif p.dst & c.dst: n = max(n, k)
        else:
            if p.dst & (c.src | c.dst): n = max(n, k)
            if c.kind in VALUK and p.srcC & c.dst: n = max(n, {4: 3, 8: 7}[p.passes])
            if c.kind in ("ds", "vmem") and p.srcC & c.dst: n = max(n, {4: 3, 8: 7}[p.passes])
    if p.kind == "salu" and ("m0", 0) in p.dst and c.kind == "vmem" and c.lds: n = max(n, 1)
    if p.kind == "vmem" and p.wide_store and (p.wide_store & c.dst): n = max(n, 2)
    if p.kind == "ds" and p.op.startswith("ds_write") and ("b128" in p.op or "b96" in p.op) and c.kind in VALUK and (p.src & c.dst): n = max(n, 2)
    return n

class Emitter:
    def __init__(self):
        self.lines = []
        self.hist = []
        self.nnop = 0
    def raw(self, s):
        self.lines.append(s)
    def label(self, name):
        self.fence()
        self.lines.append(name + ":")
    def comment(self, s):
        self.lines.append("; " + s)
    def fence(self, n=None):
        dist = 0; worst = 0
        for p in reversed(self.hist):
            if p.kind == "mfma": w = {4: 8, 8: 12}[p.passes]
            elif p.kind in VALUK: w = 5 if any(issg(r) or r[0] == "exec" for r in p.dst) else 2
            elif p.kind == "salu" and ("m0", 0) in p.dst: w = 1
            elif p.kind == "vmem" and p.wide_store: w = 2
            else: w = 0
            worst = max(worst, w - dist)
            dist += p.states
            if dist > 24: break
        self._nop(worst)
        self.hist = []
    def _nop(self, n):
        while n > 0:
            k = min(n, 16)
            I = analyze(f"s_nop {k-1}")
            self.lines.append("    " + I.text); self.hist.append(I); self.nnop += 1
            n -= k
    def __call__(self, text):
        for t in text.split("\n"):
            t = t.strip()
            if not t: continue
            if t.startswith(";"):
                self.lines.append(t); continue
            I = analyze(t)
            if I.op.startswith(("s_cbranch", "s_branch")):
                self.fence()
            dist = 0; worst = 0
            for p in reversed(self.hist):
                worst = max(worst, need(p, I) - dist)
                dist += p.states
                if dist > 24: break
            self._nop(worst)
            self.lines.append("    " + t)
            self.hist.append(I)
            if len(self.hist) > 64: self.hist = self.hist[-40:]
    def text(self):
        return "\n".join(self.lines)

def vr(b, n=1):
    return f"v{b}" if n == 1 else f"v[{b}:{b+n-1}]"
def ar(b, n=1):
    return f"a{b}" if n == 1 else f"a[{b}:{b+n-1}]"
def sr(b, n=1):
    return f"s{b}" if n == 1 else f"s[{b}:{b+n-1}]"
```

```python
import sys, struct
sys.path.insert(0, "gen")
from emit import *

NAME = "recurrent_scan__linear_kernel_hedgehog__mixer_token_mlp__prompt"
S, D, H, F = 2048, 512, 32, 1376
WS_HT, WS_PHQ, WS_KVP, WS_ZP, WS_U, WS_O, WS_W1F = 0x000000, 0x200000, 0x600000, 0x700000, 0x800000, 0xA00000, 0xC00000
WS_USED = 0x1200000
WS_STAMP = 0x1800000
LOG2E = 1.4426950408889634
def f32(x): return "0x%08x" % struct.unpack("<I", struct.pack("<f", x))[0]
OOB = 0x7f000000

class Cnt:
    def __init__(self, e, name, mx): self.e = e; self.name = name; self.q = []; self.mx = mx
    def issue(self, tag): self.q.append(tag)
    def wait(self, tag):
        if tag not in self.q: return
        i = len(self.q) - 1 - self.q[::-1].index(tag)
        n = len(self.q) - 1 - i
        self.e(f"s_waitcnt {self.name}({min(n, self.mx)})")
        self.q = self.q[i+1:] if n <= self.mx else self.q[len(self.q) - self.mx:]
    def wait_all(self):
        self.e(f"s_waitcnt {self.name}(0)"); self.q = []
    def reset(self): self.q = []

def srd(e, d, base, nbytes, off=0):
    if off:
        e(f"s_add_u32 s{d}, s{base}, {off}")
        e(f"s_addc_u32 s{d+1}, s{base+1}, 0")
    else:
        e(f"s_mov_b32 s{d}, s{base}")
        e(f"s_mov_b32 s{d+1}, s{base+1}")
    e(f"s_mov_b32 s{d+2}, {nbytes}")
    e(f"s_mov_b32 s{d+3}, 0x20000")

def interleave(*lists):
    out = []
    n = max(len(l) for l in lists)
    for i in range(n):
        for l in lists:
            if i < len(l): out.append(l[i])
    return out

STAMPS = False
def stamp_start(e):
    if STAMPS:
        e("s_memrealtime s[96:97]")
def stamp_mid(e, k):
    if STAMPS:
        e(f"s_memrealtime s[{92+2*k}:{93+2*k}]")
def stamp_end(e, kidx, wsptr):
    if STAMPS:
        e("s_waitcnt vmcnt(0)")
        e("s_memrealtime s[98:99]")
        e("s_waitcnt lgkmcnt(0)")
        srd(e, 88, wsptr, 0x100000, WS_STAMP + kidx*0x10000)
        e("v_mov_b32 v4, s96\nv_mov_b32 v5, s92\nv_mov_b32 v6, s94\nv_mov_b32 v7, s98")
        e("s_lshl_b32 s3, s2, 6")
        e("v_lshrrev_b32 v8, 6, v255\nv_lshlrev_b32 v8, 4, v8")
        e("s_mov_b64 exec, 1")
        e("buffer_store_dwordx4 v[4:7], v8, s[88:91], s3 offen")

def softmax_pair(P0, P1, O0, O1, T, sL, sNL):
    L = []
    a = L.append
    m0, n0, m1, n1, f, g, h = T, T+1, T+2, T+3, T+4, T+5, T+6
    E = T + 8
    for (P, m, n) in ((P0, m0, n0), (P1, m1, n1)):
        a(f"v_max3_f32 v{m}, v{P}, v{P+1}, v{P+2}")
        a(f"v_max3_f32 v{n}, -v{P}, -v{P+1}, -v{P+2}")
        a(f"v_max_f32 v{m}, v{m}, v{P+3}")
        a(f"v_max_f32_e64 v{n}, v{n}, -v{P+3}")
    def network(op, mid):
        a(f"v_permlane32_swap_b32 v{m0}, v{n0}")
        a(f"v_permlane32_swap_b32 v{m1}, v{n1}")
        a(f"{op} v{m0}, v{m0}, v{n0}")
        a(f"{op} v{m1}, v{m1}, v{n1}")
        a(f"v_permlane16_swap_b32 v{m0}, v{m1}")
        a(f"{op} v{m0}, v{m0}, v{m1}")
        a(mid.format(r=f"v{m0}"))
        a(f"v_mov_b32 v{m1}, v{m0}")
        a(f"v_permlane16_swap_b32 v{m0}, v{m1}")
        a(f"v_mov_b32 v{n0}, v{m0}")
        a(f"v_mov_b32 v{n1}, v{m1}")
        a(f"v_permlane32_swap_b32 v{m0}, v{n0}")
        a(f"v_permlane32_swap_b32 v{m1}, v{n1}")
    network("v_max_f32", "v_mul_f32 {r}, " + f"s{sNL}" + ", {r}")
    for ti, (P, m, n) in enumerate(((P0, m0, n0), (P1, m1, n1))):
        for r in range(4):
            a(f"v_fma_f32 v{E+8*ti+r}, v{P+r}, s{sL}, v{m}")
            a(f"v_fma_f32 v{E+8*ti+4+r}, -v{P+r}, s{sL}, v{n}")
    for i in range(16):
        a(f"v_exp_f32 v{E+i}, v{E+i}")
    for ti, (m, n) in enumerate(((m0, n0), (m1, n1))):
        for sg, d in enumerate((m, n)):
            b = E + 8*ti + 4*sg
            a(f"v_add_f32 v{d}, v{b}, v{b+1}")
            a(f"v_add_f32 v{f+sg}, v{b+2}, v{b+3}")
            a(f"v_add_f32 v{d}, v{d}, v{f+sg}")
    network("v_add_f32", "v_rcp_f32 {r}, {r}")
    for ti, (O, m, n) in enumerate(((O0, m0, n0), (O1, m1, n1))):
        for sg, d in enumerate((m, n)):
            b = E + 8*ti + 4*sg
            for r in range(4):
                a(f"v_mul_f32 v{b+r}, v{b+r}, v{d}")
            a(f"v_cvt_pk_bf16_f32 v{O+2*sg}, v{b}, v{b+1}")
            a(f"v_cvt_pk_bf16_f32 v{O+2*sg+1}, v{b+2}, v{b+3}")
    return L

K1_XS = 16384
K1_WB = 3*16384
K1_WS = 16384
K1_ST = K1_WB + 3*K1_WS
K1_HX = K1_ST + 2048
K1_W1 = K1_HX + 16384
K1_LDS = K1_W1 + 44032

def gen_k1(e):
    k = "k1_kernel"
    e.raw(f".globl {k}\n.p2align 8\n.type {k},@function\n{k}:")
    stamp_start(e)
    e("s_cmp_ge_u32 s2, 256")
    e(f"s_cbranch_scc1 {k}_done")
    e("s_load_dwordx4 s[4:7], s[0:1], 0")
    e("s_load_dwordx2 s[8:9], s[0:1], 16")
    e("s_load_dwordx2 s[10:11], s[0:1], 40")
    e("s_load_dwordx2 s[12:13], s[0:1], 88")
    sW, sTB, sHG, sROLE, sROT, sST, sXO, sWO, sM0X, sM0W, sDEL, sL, sNL, sT0, sT1, sHEAD, sSLOT = range(48, 65)
    e("v_mov_b32 v255, v0")
    e("v_and_b32 v1, 63, v0")
    e("v_lshrrev_b32 v2, 6, v0")
    e(f"v_readfirstlane_b32 s{sW}, v2")
    e(f"s_and_b32 s{sT0}, s2, 7")
    e(f"s_lshr_b32 s{sT1}, s2, 3")
    e(f"s_and_b32 s{sROLE}, s{sT1}, 1")
    e(f"s_lshr_b32 s{sT1}, s{sT1}, 1")
    e(f"s_lshr_b32 s{sTB}, s{sT0}, 1")
    e(f"s_lshl_b32 s{sTB}, s{sTB}, 2")
    e(f"s_lshr_b32 s3, s{sT1}, 2")
    e(f"s_add_u32 s{sTB}, s{sTB}, s3")
    e(f"s_and_b32 s{sHG}, s{sT0}, 1")
    e(f"s_lshl_b32 s{sHG}, s{sHG}, 2")
    e(f"s_and_b32 s3, s{sT1}, 3")
    e(f"s_add_u32 s{sHG}, s{sHG}, s3")
    e(f"s_add_u32 s{sROT}, s{sHG}, s{sTB}")
    e(f"s_and_b32 s{sROT}, s{sROT}, 3")
    e(f"s_lshl_b32 s{sROT}, s{sROT}, 1")
    e(f"s_add_u32 s{sROT}, s{sROT}, s{sROLE}")
    e(f"s_lshl_b32 s{sHEAD}, s{sHG}, 2")
    e(f"s_add_u32 s{sHEAD}, s{sHEAD}, s{sW}")
    e(f"s_mov_b32 s{sL}, {f32(LOG2E)}")
    e(f"s_mov_b32 s{sNL}, {f32(-LOG2E)}")
    vG, vC, vR4, vC4, vL3, vL7 = 3, 4, 5, 6, 7, 8
    e(f"v_lshrrev_b32 v{vG}, 4, v1")
    e(f"v_and_b32 v{vC}, 15, v1")
    e(f"v_bfe_u32 v{vR4}, v1, 2, 2")
    e(f"v_and_b32 v{vC4}, 3, v1")
    e(f"v_lshrrev_b32 v{vL3}, 3, v1")
    e(f"v_and_b32 v{vL7}, 7, v1")
    vXD, vWD, vXA, vWA = 10, 14, 18, 26
    vT = 28
    e(f"v_lshl_add_u32 v{vT}, v2, 5, v{vL3}")
    for n in range(4):
        e(f"v_xor_b32 v{vT+1}, {4*(n & 1)}, v{vG}")
        e(f"v_xor_b32 v{vT+1}, v{vT+1}, v{vL7}")
        e(f"v_lshlrev_b32 v{vT+1}, 4, v{vT+1}")
        e(f"v_add_u32 v{vT+2}, {7*n}, v{vT}")
        e(f"v_lshl_add_u32 v{vXD+n}, v{vT+2}, 10, v{vT+1}")
    e(f"v_lshl_add_u32 v{vT}, v2, 4, v{vL3}")
    e(f"v_and_b32 v{vT+3}, 1, v{vG}")
    e(f"v_lshlrev_b32 v{vT+3}, 1, v{vT+3}")
    e(f"v_xor_b32 v{vT+3}, v{vT+3}, v{vL7}")
    e("s_movk_i32 s3, 3072")
    for a in range(2):
        for n in range(2):
            i = 2*a + n
            e(f"v_xor_b32 v{vT+1}, {4*n}, v{vT+3}")
            e(f"v_lshlrev_b32 v{vT+1}, 4, v{vT+1}")
            e(f"v_add_u32 v{vT+2}, {8*n}, v{vT}")
            e(f"v_mad_u32_u24 v{vWD+i}, v{vT+2}, s3, v{vT+1}")
            cst = a*1024 - i*1024 + 2048
            if cst: e(f"v_add_u32 v{vWD+i}, {cst}, v{vWD+i}")
    e(f"v_lshrrev_b32 v{vT}, 1, v{vC}")
    e(f"v_xor_b32 v{vT}, v{vT}, v{vG}")
    e(f"v_lshlrev_b32 v{vT}, 4, v{vT}")
    e(f"v_lshl_add_u32 v{vT}, v{vC}, 7, v{vT}")
    e(f"v_lshl_add_u32 v{vT}, v2, 12, v{vT}")
    for j in range(4):
        for kk in range(2):
            e(f"v_xor_b32 v{vXA+2*j+kk}, {j*4096 + kk*64}, v{vT}")
    e(f"v_and_b32 v{vT}, 1, v{vG}")
    e(f"v_lshrrev_b32 v{vT+1}, 1, v{vR4}")
    e(f"v_lshl_or_b32 v{vT+1}, v{vT}, 1, v{vT+1}")
    e(f"v_xor_b32 v{vT+1}, v{vT+1}, v2")
    e(f"v_lshlrev_b32 v{vT+1}, 5, v{vT+1}")
    e(f"v_lshl_add_u32 v{vT+1}, v{vC4}, 3, v{vT+1}")
    e(f"v_lshl_add_u32 v{vT}, v{vT}, 3, v{vR4}")
    e(f"v_lshl_add_u32 v{vT+1}, v{vT}, 7, v{vT+1}")
    e(f"v_lshrrev_b32 v{vT}, 1, v{vG}")
    e(f"v_lshl_add_u32 v{vT+1}, v{vT}, 12, v{vT+1}")
    e(f"v_add_u32 v{vWA}, {K1_WB}, v{vT+1}")
    accA, accB, csA, csB, rs, sq = 64, 96, 128, 132, 136, 144
    XF, WF, ONES = 160, 224, 240
    vPH, vID = 244, 246
    vPL = 248
    for r in range(64, 146): e(f"v_mov_b32 v{r}, 0")
    for r in range(4): e(f"v_mov_b32 v{ONES+r}, 0x3f803f80")
    e("s_waitcnt lgkmcnt(0)")
    srd(e, 16, 4, S*D*2)
    srd(e, 20, 6, D*3*D*2)
    srd(e, 24, 8, H*16*16*2)
    srd(e, 28, 10, S*F*2)
    srd(e, 32, 12, WS_USED)
    sXB, sWB = 66, 67
    e(f"s_lshl_b32 s{sXB}, s{sTB}, 17")
    e(f"s_lshl_b32 s{sWB}, s{sHG}, 7")
    e(f"s_cmp_eq_u32 s{sROLE}, 0")
    e(f"s_cselect_b32 s3, 1024, 0")
    e(f"s_add_u32 s{sWB}, s{sWB}, s3")
    e("s_sub_u32 s20, s20, 2048")
    e("s_subb_u32 s21, s21, 0")
    e(f"s_mov_b32 s22, {D*3*D*2 + 2048}")
    e(f"s_lshl_b32 s{sM0X}, s{sW}, 12")
    e(f"s_add_u32 s{sM0W}, s{sM0X}, {K1_WB}")

    def dma_list(nW, sStage, slot_s):
        pre = [f"s_lshl_b32 s{sXO}, s{sStage}, 7", f"s_add_u32 s{sXO}, s{sXO}, s{sXB}",
               f"s_mul_i32 s{sWO}, s{sStage}, {64*3072}", f"s_add_u32 s{sWO}, s{sWO}, s{sWB}"]
        G = []
        for n in range(4):
            g = []
            if n == 0: g += pre + [f"s_add_u32 m0, s{sM0X}, s{slot_s}"]
            g.append(f"buffer_load_dwordx4 v{vXD+n}, s[16:19], s{sXO} offen offset:{n*1024} lds")
            G.append(g)
        for i in range(2*nW):
            g = []
            if i == 0: g.append(f"s_add_u32 m0, s{sM0W}, s{slot_s}")
            g.append(f"buffer_load_dwordx4 v{vWD+i}, s[20:23], s{sWO} offen offset:{i*1024} lds")
            G.append(g)
        return G

    sRS = 68
    sISL = 69
    def role_code(role):
        nW = 2 if role == "kv" else 1
        nps = 4 + 2*nW
        lab = f"{k}_{role}"
        e(f"v_lshlrev_b32 v{vT}, 7, v{vG}")
        e(f"v_lshl_add_u32 v{vT}, v{vC}, 1, v{vT}")
        e(f"s_lshl_b32 s3, s{sHEAD}, 9")
        for i in range(4):
            e(f"buffer_load_ushort v{vPL+i}, v{vT}, s[24:27], s3 offen offset:{i*32}")
        for st in range(2):
            e(f"s_add_u32 s{sRS}, s{sROT}, {st}")
            e(f"s_and_b32 s{sRS}, s{sRS}, 7")
            e(f"s_mov_b32 s{sISL}, {st*16384}")
            for g in dma_list(nW, sRS, sISL):
                for t in g: e(t)
        e(f"s_mov_b32 s{sST}, 0")
        e(f"s_mov_b32 s{sSLOT}, 0")
        e(f"s_mov_b32 s{sISL}, {2*16384}")

        def stage(vm_wait, dma, extra=None):
            e(f"s_waitcnt vmcnt({vm_wait})")
            e("s_barrier")
            lg = Cnt(e, "lgkmcnt", 15)
            def rdW(kk):
                for a in range(nW):
                    for h in range(2):
                        e(f"ds_read_b64_tr_b16 v[{WF+8*kk+4*a+2*h}:{WF+8*kk+4*a+2*h+1}], v{vWA} offset:{kk*8192 + a*2048 + h*512}")
                        lg.issue(("W", kk))
            def rdX(kk, t):
                b = XF + 32*kk + 4*t
                e(f"ds_read_b128 v[{b}:{b+3}], v{vXA + 2*(t >> 1) + kk} offset:{(t & 1)*2048}")
                lg.issue(("X", kk, t))
            rdW(0)
            for t in range(8): rdX(0, t)
            G = []
            if dma:
                e(f"s_add_u32 s{sRS}, s{sROT}, s{sST}")
                e(f"s_add_u32 s{sRS}, s{sRS}, 2")
                e(f"s_and_b32 s{sRS}, s{sRS}, 7")
                G = dma_list(nW, sRS, sISL)
            if extra: G = extra
            G = list(G)
            for kk in range(2):
                wa = f"v[{WF+8*kk}:{WF+8*kk+3}]"; wb = f"v[{WF+8*kk+4}:{WF+8*kk+7}]"
                for t in range(8):
                    lg.wait(("X", kk, t))
                    x = f"v[{XF+32*kk+4*t}:{XF+32*kk+4*t+3}]"
                    e(f"v_mfma_f32_16x16x32_bf16 v[{accA+4*t}:{accA+4*t+3}], {wa}, {x}, v[{accA+4*t}:{accA+4*t+3}]")
                    if kk == 0:
                        if t == 0: rdW(1)
                        rdX(1, t)
                    if nW == 2:
                        e(f"v_mfma_f32_16x16x32_bf16 v[{accB+4*t}:{accB+4*t+3}], {x}, {wb}, v[{accB+4*t}:{accB+4*t+3}]")
                    if t < 2:
                        e(f"v_mfma_f32_16x16x32_bf16 v[{rs+4*t}:{rs+4*t+3}], v[{ONES}:{ONES+3}], {x}, v[{rs+4*t}:{rs+4*t+3}]")
                        for r in range(4):
                            e(f"v_dot2c_f32_bf16 v{sq+t}, v{XF+32*kk+4*t+r}, v{XF+32*kk+4*t+r}")
                    if t == 2:
                        e(f"v_mfma_f32_16x16x32_bf16 v[{csA}:{csA+3}], {wa}, v[{ONES}:{ONES+3}], v[{csA}:{csA+3}]")
                    if t == 3 and nW == 2:
                        e(f"v_mfma_f32_16x16x32_bf16 v[{csB}:{csB+3}], v[{ONES}:{ONES+3}], {wb}, v[{csB}:{csB+3}]")
                    ng = 1 if len(G) <= (16 - (8*kk + t)) else 2
                    for _ in range(ng):
                        if G:
                            for tx in G.pop(0): e(tx)
            for g in G:
                for tx in g: e(tx)
            e(f"s_add_u32 s{sSLOT}, s{sSLOT}, 1")
            e(f"s_cmp_eq_u32 s{sSLOT}, 3")
            e(f"s_cselect_b32 s{sDEL}, -2, 1")
            e(f"s_cselect_b32 s{sSLOT}, 0, s{sSLOT}")
            e(f"s_lshl_b32 s{sDEL}, s{sDEL}, 14")
            e(f"s_add_u32 s{sISL}, s{sISL}, 16384")
            e(f"s_cmp_eq_u32 s{sISL}, {3*16384}")
            e(f"s_cselect_b32 s{sISL}, 0, s{sISL}")
            for r in list(range(vXA, vXA+8)) + [vWA]:
                e(f"v_add_u32 v{r}, s{sDEL}, v{r}")
        e.label(f"{lab}_loop")
        stage(nps, True)
        e(f"s_add_u32 s{sST}, s{sST}, 1")
        e(f"s_cmp_lt_u32 s{sST}, 6")
        e(f"s_cbranch_scc1 {lab}_loop")
        nextra = 0
        extra = None
        if role == "q":
            extra = []
            vHD = 32
            vW1D = 36
            pre = [f"v_lshl_add_u32 v{vT}, v2, 5, v{vL3}",
                   f"v_and_b32 v{vT+3}, 1, v{vG}", f"v_lshlrev_b32 v{vT+3}, 1, v{vT+3}", f"v_xor_b32 v{vT+3}, v{vT+3}, v{vL7}"]
            for n in range(4):
                pre += [f"v_xor_b32 v{vT+1}, {4*(n & 1)}, v{vT+3}", f"v_lshlrev_b32 v{vT+1}, 4, v{vT+1}",
                        f"v_add_u32 v{vT+2}, {7*n}, v{vT}", f"v_lshl_add_u32 v{vHD+n}, v{vT+2}, 10, v{vT+1}"]
            pre += [f"v_lshlrev_b32 v{vW1D}, 4, v1"]
            for t in pre: e(t)
            g0 = [f"s_lshl_b32 s{sXO}, s{sHG}, 7", f"s_add_u32 s{sXO}, s{sXO}, s{sXB}", f"s_add_u32 m0, s{sM0X}, {K1_HX}"]
            for n in range(4):
                extra.append((g0 if n == 0 else []) + [f"buffer_load_dwordx4 v{vHD+n}, s[16:19], s{sXO} offen offset:{n*1024} lds"])
            sQI = 70
            g1 = [f"s_lshl_b32 s{sQI}, s{sTB}, 3", f"s_add_u32 s{sQI}, s{sQI}, s{sHG}",
                  f"s_mul_i32 s{sWO}, s{sQI}, {16*F*2}", f"s_mul_i32 s3, s{sW}, {11*1024}", f"s_add_u32 s{sWO}, s{sWO}, s3",
                  f"s_add_u32 s{sT0}, s3, {K1_W1}"]
            for i in range(11):
                g = list(g1) if i == 0 else []
                if i % 4 == 0:
                    g += [f"s_add_u32 m0, s{sT0}, {i*1024}"]
                    if i: g += [f"s_add_u32 s{sWO}, s{sWO}, 4096"]
                if i == 10:
                    g += [f"s_cmp_eq_u32 s{sW}, 3", f"s_cselect_b32 s{sWO}, {OOB}, s{sWO}"]
                g.append(f"buffer_load_dwordx4 v{vW1D}, s[28:31], s{sWO} offen offset:{(i % 4)*1024} lds")
                extra.append(g)
            nextra = len(extra)
        stage(nps, False, extra)
        stage(nextra, False)
        stamp_mid(e, 0)
        e(f"v_permlane32_swap_b32 v{sq}, v{sq+1}")
        e(f"v_add_f32 v{sq}, v{sq}, v{sq+1}")
        e(f"v_mov_b32 v{sq+1}, v{sq}")
        e(f"v_permlane16_swap_b32 v{sq}, v{sq+1}")
        e(f"v_add_f32 v{sq}, v{sq}, v{sq+1}")
        e("v_cmp_gt_u32 vcc, 32, v1")
        e(f"v_cndmask_b32 v{vT}, v{rs+4}, v{rs}, vcc")
        e(f"v_mul_f32 v{vT}, {f32(1.0/D)}, v{vT}")
        e(f"v_mul_f32 v{vT+1}, v{vT}, v{vT}")
        e(f"s_mov_b32 s3, {f32(1.0/D)}")
        e(f"v_fma_f32 v{vT+1}, v{sq}, s3, -v{vT+1}")
        e(f"v_max_f32 v{vT+1}, 0, v{vT+1}")
        e(f"v_add_f32 v{vT+2}, {f32(1e-5)}, v{vT+1}")
        e(f"v_rsq_f32 v{vT+2}, v{vT+2}")
        e(f"v_mul_f32_e64 v{vT+3}, -v{vT}, v{vT+2}")
        vS = 40
        e(f"v_lshrrev_b32 v{vS}, 5, v1")
        e(f"v_lshl_add_u32 v{vS}, v{vS}, 4, v{vC}")
        e(f"v_lshl_add_u32 v{vS}, v2, 5, v{vS}")
        e(f"v_lshlrev_b32 v{vS}, 2, v{vS}")
        e(f"v_add_u32 v{vS}, {K1_ST}, v{vS}")
        e(f"ds_write_b32 v{vS}, v{vT+2}")
        e(f"ds_write_b32 v{vS}, v{vT+3} offset:512")
        if role == "q":
            e(f"v_mul_f32 v{vS+1}, v{vT+2}, v{vT+2}")
            e(f"v_mul_f32 v{vS+1}, v{vS+1}, v{vT+1}")
            e(f"v_add_f32 v{vS+1}, {f32(1e-5)}, v{vS+1}")
            e(f"v_rsq_f32 v{vS+1}, v{vS+1}")
            e(f"v_mul_f32 v{vS+1}, v{vS+1}, v{vT+2}")
            e(f"v_mul_f32_e64 v{vS+2}, -v{vT}, v{vS+1}")
            e(f"ds_write_b32 v{vS}, v{vS+1} offset:1024")
            e(f"ds_write_b32 v{vS}, v{vS+2} offset:1536")
        e(f"v_lshl_or_b32 v{vPH}, v{vPL+1}, 16, v{vPL}")
        e(f"v_lshl_or_b32 v{vPH+1}, v{vPL+3}, 16, v{vPL+2}")
        e("s_waitcnt lgkmcnt(0)")
        e("s_barrier")
        CS = XF
        vCB = 41
        e(f"v_lshlrev_b32 v{vCB}, 2, v{vC}")
        e(f"v_lshl_add_u32 v{vCB}, v2, 7, v{vCB}")
        e(f"v_add_u32 v{vCB}, {K1_ST}, v{vCB}")
        for j in range(4):
            e(f"v_xor_b32 v{vT}, {j*128}, v{vCB}")
            for u in range(2):
                t = 2*j + u
                e(f"ds_read2_b32 v[{CS+2*t}:{CS+2*t+1}], v{vT} offset0:{u*16} offset1:{128+u*16}")
        RS_ = XF + 16
        vRB = 42
        if role == "kv":
            e(f"v_lshlrev_b32 v{vRB}, 4, v{vG}")
            e(f"v_lshl_add_u32 v{vRB}, v2, 7, v{vRB}")
            e(f"v_add_u32 v{vRB}, {K1_ST}, v{vRB}")
            e(f"v_lshlrev_b32 v{vT}, 2, v{vG}")
            e(f"v_sub_u32 v{vT}, v{vC}, v{vT}")
            e(f"v_mov_b32 v{vT+1}, 0x3f80")
            e(f"v_mov_b32 v{vT+2}, 0x3f800000")
            for rr in range(2):
                e(f"v_cmp_eq_u32 vcc, {2*rr}, v{vT}")
                e(f"v_cndmask_b32 v{vID+rr}, 0, v{vT+1}, vcc")
                e(f"v_cmp_eq_u32 vcc, {2*rr+1}, v{vT}")
                e(f"v_cndmask_b32 v{vID+rr}, v{vID+rr}, v{vT+2}, vcc")
        e("s_waitcnt lgkmcnt(0)")
        KB = XF + 16
        for t in range(8):
            for r in range(4):
                e(f"v_mul_f32 v{vT+r}, v{csA+r}, v{CS+2*t+1}")
            for r in range(4):
                e(f"v_fma_f32 v{accA+4*t+r}, v{accA+4*t+r}, v{CS+2*t}, v{vT+r}")
            e(f"v_cvt_pk_bf16_f32 v{KB+2*t}, v{accA+4*t}, v{accA+4*t+1}")
            e(f"v_cvt_pk_bf16_f32 v{KB+2*t+1}, v{accA+4*t+2}, v{accA+4*t+3}")
        for t in range(8):
            e(f"v_mfma_f32_16x16x16_bf16 v[{accA+4*t}:{accA+4*t+3}], v[{vPH}:{vPH+1}], v[{KB+2*t}:{KB+2*t+1}], 0")
        PH = XF + 32
        TA, TB_ = 10, 34
        vRB2 = 60
        if role == "kv": e(f"v_mov_b32 v{vRB2}, v{vRB}")
        for half in range(2):
            t0 = 4*half
            la = softmax_pair(accA+4*t0, accA+4*t0+4, PH+4*t0, PH+4*t0+4, TA, sL, sNL)
            lb = softmax_pair(accA+4*t0+8, accA+4*t0+12, PH+4*t0+8, PH+4*t0+12, TB_, sL, sNL)
            for tx in interleave(la, lb): e(tx)
        vL16 = 58
        e(f"v_lshlrev_b32 v{vL16}, 4, v1")
        if role == "q":
            e(f"s_lshl_b32 s{sT0}, s{sTB}, 18")
            e(f"s_lshl_b32 s3, s{sHEAD}, 10")
            e(f"s_add_u32 s{sT0}, s{sT0}, s3")
            e(f"s_add_u32 s{sT0}, s{sT0}, {WS_PHQ}")
            e(f"s_lshl_b32 s{sT1}, s{sW}, 16")
            for t in range(8):
                e(f"s_xor_b32 s3, s{sT1}, {t*32768}")
                e(f"s_add_u32 s3, s3, s{sT0}")
                e(f"buffer_store_dwordx4 v[{PH+4*t}:{PH+4*t+3}], v{vL16}, s[32:35], s3 offen")
            e("s_waitcnt vmcnt(19)")
            vH = 10
            e(f"v_and_b32 v{vH+1}, 1, v{vG}")
            e(f"v_lshrrev_b32 v{vH+2}, 1, v{vR4}")
            e(f"v_lshl_or_b32 v{vH+2}, v{vH+1}, 1, v{vH+2}")
            e(f"v_lshlrev_b32 v{vH+2}, 1, v{vH+2}")
            e(f"v_xor_b32 v{vH+2}, v{vH+2}, v{vC4}")
            e(f"v_lshlrev_b32 v{vH+2}, 4, v{vH+2}")
            e(f"v_lshl_add_u32 v{vH+1}, v{vG}, 3, v{vR4}")
            e(f"v_lshl_add_u32 v{vH+1}, v2, 5, v{vH+1}")
            e(f"v_lshl_add_u32 v{vH}, v{vH+1}, 7, v{vH+2}")
            e(f"v_add_u32 v{vH}, {K1_HX}, v{vH}")
            e(f"v_xor_b32 v{vH+1}, 64, v{vH}")
            e(f"v_lshlrev_b32 v{vH+2}, 5, v{vG}")
            e(f"v_lshl_add_u32 v{vH+2}, v2, 7, v{vH+2}")
            e(f"v_add_u32 v{vH+2}, {K1_ST}, v{vH+2}")
            HA, HB, HXr, HT_ = 64, 72, 80, 96
            e(f"ds_read_b128 v[{HA}:{HA+3}], v{vH+2} offset:1024")
            e(f"ds_read_b128 v[{HA+4}:{HA+7}], v{vH+2} offset:1040")
            e(f"ds_read_b128 v[{HB}:{HB+3}], v{vH+2} offset:1536")
            e(f"ds_read_b128 v[{HB+4}:{HB+7}], v{vH+2} offset:1552")
            for dt in range(4):
                p, ee = dt >> 1, dt & 1
                for h in range(2):
                    e(f"ds_read_b64_tr_b16 v[{HXr+4*dt+2*h}:{HXr+4*dt+2*h+1}], v{vH+p} offset:{h*512 + ee*8}")
            e("s_waitcnt lgkmcnt(0)")
            e(f"s_lshl_b32 s{sT0}, s{sHG}, 18")
            e(f"s_lshl_b32 s3, s{sTB}, 12")
            e(f"s_add_u32 s{sT0}, s{sT0}, s3")
            e(f"s_lshl_b32 s3, s{sW}, 10")
            e(f"s_add_u32 s{sT0}, s{sT0}, s3")
            if WS_HT: e(f"s_add_u32 s{sT0}, s{sT0}, {WS_HT}")
            for dt in range(4):
                for i2 in range(4):
                    src = HXr + 4*dt + i2
                    e(f"v_lshlrev_b32 v{HT_}, 16, v{src}")
                    e(f"v_and_b32 v{HT_+1}, 0xffff0000, v{src}")
                    e(f"v_fma_f32 v{HT_}, v{HT_}, v{HA+2*i2}, v{HB+2*i2}")
                    e(f"v_fma_f32 v{HT_+1}, v{HT_+1}, v{HA+2*i2+1}, v{HB+2*i2+1}")
                    e(f"v_cvt_pk_bf16_f32 v{src}, v{HT_}, v{HT_+1}")
                e(f"s_add_u32 s3, s{sT0}, {dt*65536}")
                e(f"buffer_store_dwordx4 v[{HXr+4*dt}:{HXr+4*dt+3}], v{vL16}, s[32:35], s3 offen")
            e("s_waitcnt vmcnt(12)")
            e("s_barrier")
            vA, vO = 10, 11
            e(f"v_and_b32 v{vA}, 1, v{vG}")
            e(f"v_lshl_add_u32 v{vO}, v{vA}, 3, v{vR4}")
            e(f"s_movk_i32 s3, {F*2}")
            e(f"v_mul_lo_u32 v{vO}, v{vO}, s3")
            e(f"v_lshrrev_b32 v{vA+2}, 1, v{vG}")
            e(f"v_lshl_add_u32 v{vO}, v{vA+2}, 5, v{vO}")
            e(f"v_lshl_add_u32 v{vO}, v{vC4}, 3, v{vO}")
            e(f"v_lshl_add_u32 v{vO}, v2, 6, v{vO}")
            e(f"v_add_u32 v{vA+3}, {K1_W1}, v{vO}")
            e(f"v_lshlrev_b32 v{vO}, 16, v{vA+2}")
            e(f"v_lshl_add_u32 v{vO}, v{vA}, 8, v{vO}")
            e(f"v_lshl_add_u32 v{vO}, v{vC}, 4, v{vO}")
            e(f"v_lshl_add_u32 v{vO}, v2, 17, v{vO}")
            e(f"s_lshl_b32 s{sT0}, s70, 9")
            srd(e, 36, 12, 86*65536, WS_W1F)
            WR = 100
            for i in range(11):
                e(f"ds_read_b64_tr_b16 v[{WR+4*i}:{WR+4*i+1}], v{vA+3} offset:{i*256}")
                e(f"ds_read_b64_tr_b16 v[{WR+4*i+2}:{WR+4*i+3}], v{vA+3} offset:{i*256 + 4*F*2}")
                if i == 6: e("s_waitcnt lgkmcnt(6)")
            for i in range(11):
                if i >= 4: e(f"s_waitcnt lgkmcnt({2*(10-i)})")
                e(f"s_add_u32 s3, s{sT0}, {i*4*131072}")
                e(f"buffer_store_dwordx4 v[{WR+4*i}:{WR+4*i+3}], v{vO}, s[36:39], s3 offen")
        else:
            KVP_, KVM, ZP_, ZM = 64, 68, 72, 76
            TT = 80
            TP = 10
            VP = 20
            RA = 24
            VT = 40
            for r in range(KVP_, KVP_+16): e(f"v_mov_b32 v{r}, 0")
            for j in range(4):
                e(f"v_xor_b32 v{VT}, {j*128}, v{vRB2}")
                for u in range(2):
                    e(f"ds_read_b128 v[{RA+4*u}:{RA+4*u+3}], v{VT} offset:{u*64}")
                    e(f"ds_read_b128 v[{RA+8+4*u}:{RA+8+4*u+3}], v{VT} offset:{512+u*64}")
                for u in range(2):
                    t = 2*j + u
                    for sg in range(2):
                        d = TT + 8*sg + 4*u
                        e(f"v_mfma_f32_16x16x16_bf16 v[{d}:{d+3}], v[{PH+4*t+2*sg}:{PH+4*t+2*sg+1}], v[{vID}:{vID+1}], 0")
                e("s_waitcnt lgkmcnt(0)")
                for u in range(2):
                    t = 2*j + u
                    for r in range(4):
                        e(f"v_mul_f32 v{VT+r}, v{csB}, v{RA+8+4*u+r}")
                    for r in range(4):
                        e(f"v_fma_f32 v{VT+r}, v{accB+4*t+r}, v{RA+4*u+r}, v{VT+r}")
                    e(f"v_cvt_pk_bf16_f32 v{VP+2*u}, v{VT}, v{VT+1}")
                    e(f"v_cvt_pk_bf16_f32 v{VP+2*u+1}, v{VT+2}, v{VT+3}")
                for sg in range(2):
                    for u in range(2):
                        d = TT + 8*sg + 4*u
                        e(f"v_cvt_pk_bf16_f32 v{TP+4*sg+2*u}, v{d}, v{d+1}")
                        e(f"v_cvt_pk_bf16_f32 v{TP+4*sg+2*u+1}, v{d+2}, v{d+3}")
                for sg in range(2):
                    a_ = f"v[{TP+4*sg}:{TP+4*sg+3}]"
                    e(f"v_mfma_f32_16x16x32_bf16 v[{KVP_+4*sg}:{KVP_+4*sg+3}], {a_}, v[{VP}:{VP+3}], v[{KVP_+4*sg}:{KVP_+4*sg+3}]")
                    e(f"v_mfma_f32_16x16x32_bf16 v[{ZP_+4*sg}:{ZP_+4*sg+3}], {a_}, v[{ONES}:{ONES+3}], v[{ZP_+4*sg}:{ZP_+4*sg+3}]")
            e(f"s_lshl_b32 s{sT0}, s{sHEAD}, 4")
            e(f"s_add_u32 s{sT0}, s{sT0}, s{sTB}")
            e(f"s_lshl_b32 s3, s{sT0}, 11")
            e(f"s_add_u32 s3, s3, {WS_KVP}")
            e(f"buffer_store_dwordx4 v[{KVP_}:{KVP_+3}], v{vL16}, s[32:35], s3 offen")
            e(f"buffer_store_dwordx4 v[{KVM}:{KVM+3}], v{vL16}, s[32:35], s3 offen offset:1024")
            e(f"s_lshl_b32 s3, s{sT0}, 7")
            e(f"s_add_u32 s3, s3, {WS_ZP}")
            e(f"v_lshlrev_b32 v{VT}, 4, v{vG}")
            e("s_mov_b32 exec_lo, 0x00010001")
            e("s_mov_b32 exec_hi, 0x00010001")
            e(f"buffer_store_dwordx4 v[{ZP_}:{ZP_+3}], v{VT}, s[32:35], s3 offen")
            e(f"buffer_store_dwordx4 v[{ZM}:{ZM+3}], v{VT}, s[32:35], s3 offen offset:64")
            e("s_mov_b64 exec, -1")
        stamp_mid(e, 1)
        stamp_end(e, 0, 12)
        e("s_endpgm")

    e(f"s_cmp_eq_u32 s{sROLE}, 0")
    e(f"s_cbranch_scc0 {k}_qrole")
    role_code("kv")
    e.label(f"{k}_qrole")
    role_code("q")
    e.label(f"{k}_done")
    e("s_endpgm")
    return k, 256, 256, K1_LDS, 256

K2_LDS = 4*3*4096
def gen_k2(e):
    k = "k2_kernel"
    e.raw(f".globl {k}\n.p2align 8\n.type {k},@function\n{k}:")
    stamp_start(e)
    e("s_cmp_ge_u32 s2, 240")
    e(f"s_cbranch_scc1 {k}_done")
    e("s_load_dwordx2 s[4:5], s[0:1], 48")
    e("s_load_dwordx2 s[12:13], s[0:1], 88")
    sW, sX, sI, sDQ, sFQ, sROT, sJ, sAO, sBO, sAB, sBB, sT0, sT1 = range(48, 61)
    e("v_mov_b32 v255, v0")
    e("v_and_b32 v1, 63, v0")
    e("v_lshrrev_b32 v2, 6, v0")
    e(f"v_readfirstlane_b32 s{sW}, v2")
    e(f"s_and_b32 s{sX}, s2, 7")
    e(f"s_lshr_b32 s{sI}, s2, 3")
    vG, vC, vL16 = 3, 4, 5
    e(f"v_lshrrev_b32 v{vG}, 4, v1")
    e(f"v_and_b32 v{vC}, 15, v1")
    e(f"v_lshlrev_b32 v{vL16}, 4, v1")
    e(f"s_cmp_ge_u32 s{sI}, 22")
    e(f"s_cbranch_scc1 {k}_orole")
    e(f"s_mul_i32 s3, s{sX}, 22")
    e(f"s_add_u32 s3, s3, s{sI}")
    e(f"s_lshr_b32 s{sFQ}, s3, 3")
    e(f"s_and_b32 s{sDQ}, s3, 7")
    e(f"s_mul_i32 s{sROT}, s{sFQ}, 5")
    e(f"s_lshl_b32 s3, s{sDQ}, 1")
    e(f"s_add_u32 s{sROT}, s{sROT}, s3")
    vAO, vBO = 8, 12
    for j in range(4):
        e(f"v_add_u32 v{vAO+j}, {j*65536}, v{vL16}")
    e(f"v_lshl_add_u32 v6, v2, 16, v{vL16}")
    for j in range(4):
        e(f"v_xor_b32 v{vBO+j}, {j*65536}, v6")
    ACC = 64
    RING = 128
    for r in range(ACC, ACC+64): e(f"v_mov_b32 v{r}, 0")
    e(f"s_lshl_b32 s{sAB}, s{sFQ}, 18")
    e(f"s_lshl_b32 s{sBB}, s{sDQ}, 18")
    e(f"s_lshl_b32 s3, s{sW}, 14")
    e(f"s_add_u32 s{sAB}, s{sAB}, s3")
    e(f"s_add_u32 s{sBB}, s{sBB}, s3")
    e("s_waitcnt lgkmcnt(0)")
    srd(e, 16, 12, 86*65536, WS_W1F)
    srd(e, 20, 12, 32*65536, WS_HT)
    srd(e, 24, 4, F*2)
    srd(e, 28, 12, 32*43*1024, WS_U)
    vB1 = 16
    e(f"v_lshlrev_b32 v7, 3, v{vG}")
    e(f"s_lshl_b32 s3, s{sFQ}, 7")
    for ft in range(4):
        e(f"buffer_load_dwordx2 v[{vB1+2*ft}:{vB1+2*ft+1}], v7, s[24:27], s3 offen offset:{ft*32}")
    def loads(slot, valid=True):
        L = [[f"s_add_u32 s3, s{sJ}, s{sROT}", "s_and_b32 s3, s3, 15", "s_lshl_b32 s3, s3, 10",
              f"s_add_u32 s{sAO}, s{sAB}, s3", f"s_add_u32 s{sBO}, s{sBB}, s3", f"s_add_u32 s{sJ}, s{sJ}, 1"]]
        for j in range(4):
            b = RING + 32*slot + 4*j
            L.append([f"buffer_load_dwordx4 v[{b}:{b+3}], v{vAO+j}, s[16:19], s{sAO} offen"])
            b += 16
            L.append([f"buffer_load_dwordx4 v[{b}:{b+3}], v{vBO+j}, s[20:23], s{sBO} offen"])
        L[1] = L[0] + L[1]
        return L[1:]
    e(f"s_mov_b32 s{sJ}, 0")
    for sl in range(3):
        for g in loads(sl):
            for t in g: e(t)
    def step(slot, vm, nxt):
        e(f"s_waitcnt vmcnt({vm})")
        G = loads((slot + 3) % 4) if nxt else []
        n = 0
        for q in range(4):
            for ft in range(4):
                a_ = RING + 32*slot + 4*ft; b_ = RING + 32*slot + 16 + 4*q; c_ = ACC + 16*q + 4*ft
                e(f"v_mfma_f32_16x16x32_bf16 v[{c_}:{c_+3}], v[{a_}:{a_+3}], v[{b_}:{b_+3}], v[{c_}:{c_+3}]")
                if n % 2 == 0 and G:
                    for t in G.pop(0): e(t)
                n += 1
    sIT = 62
    e(f"s_mov_b32 s{sIT}, 0")
    e.label(f"{k}_loop")
    for sl in range(4): step(sl, 16, True)
    e(f"s_add_u32 s{sIT}, s{sIT}, 1")
    e(f"s_cmp_lt_u32 s{sIT}, 3")
    e(f"s_cbranch_scc1 {k}_loop")
    step(0, 16, True)
    step(1, 16, False)
    step(2, 8, False)
    step(3, 0, False)
    stamp_mid(e, 0)
    vW = 24
    e(f"v_mul_u32_u24 v{vW+4}, {3*4096}, v2")
    e(f"v_add_u32 v{vW+4}, v{vW+4}, v{vL16}")
    for q in range(1, 4):
        e(f"v_xor_b32 v{vW+q}, {q}, v2")
        e(f"v_mul_u32_u24 v{vW+q}, {3*4096}, v{vW+q}")
        e(f"v_add_u32 v{vW+q}, v{vW+q}, v{vL16}")
    for q in range(1, 4):
        for ft in range(4):
            c_ = ACC + 16*q + 4*ft
            e(f"ds_write_b128 v{vW+q}, v[{c_}:{c_+3}] offset:{(q-1)*4096 + ft*1024}")
    e("s_waitcnt lgkmcnt(0)")
    e("s_barrier")
    for q in range(3):
        for ft in range(4):
            b = RING + 16*q + 4*ft
            e(f"ds_read_b128 v[{b}:{b+3}], v{vW+4} offset:{q*4096 + ft*1024}")
    vBF = 32
    for ft in range(4):
        for h in range(2):
            e(f"v_lshlrev_b32 v{vBF+4*ft+2*h}, 16, v{vB1+2*ft+h}")
            e(f"v_and_b32 v{vBF+4*ft+2*h+1}, 0xffff0000, v{vB1+2*ft+h}")
    for i in range(16): e(f"v_add_f32 v{ACC+i}, v{ACC+i}, v{vBF+i}")
    for q in range(3):
        e(f"s_waitcnt lgkmcnt({4*(2-q)})")
        for i in range(16): e(f"v_add_f32 v{ACC+i}, v{ACC+i}, v{RING+16*q+i}")
    c = 0.7978845608028654
    k1 = -2*c*LOG2E; k2 = k1*0.044715
    e(f"s_mov_b32 s{sT0}, {f32(k2)}")
    e(f"v_mov_b32 v{vW}, {f32(k1)}")
    T = RING
    for i in range(16): e(f"v_mul_f32 v{T+i}, v{ACC+i}, v{ACC+i}")
    for i in range(16): e(f"v_fma_f32 v{T+i}, v{T+i}, s{sT0}, v{vW}")
    for i in range(16): e(f"v_mul_f32 v{T+i}, v{T+i}, v{ACC+i}")
    for i in range(16): e(f"v_exp_f32 v{T+i}, v{T+i}")
    for i in range(16): e(f"v_add_f32 v{T+i}, 1.0, v{T+i}")
    for i in range(16): e(f"v_rcp_f32 v{T+i}, v{T+i}")
    for i in range(16): e(f"v_mul_f32 v{T+i}, v{T+i}, v{ACC+i}")
    for i in range(8): e(f"v_cvt_pk_bf16_f32 v{ACC+i}, v{T+2*i}, v{T+2*i+1}")
    e(f"s_lshl_b32 s3, s{sDQ}, 2")
    e(f"s_add_u32 s3, s3, s{sW}")
    e(f"s_mul_i32 s3, s3, 43")
    e(f"s_lshl_b32 s{sT0}, s{sFQ}, 1")
    e(f"s_add_u32 s3, s3, s{sT0}")
    e(f"s_lshl_b32 s3, s3, 10")
    e(f"buffer_store_dwordx4 v[{ACC}:{ACC+3}], v{vL16}, s[28:31], s3 offen")
    e(f"s_cmp_eq_u32 s{sFQ}, 21")
    e(f"s_cselect_b32 s3, {OOB}, s3")
    e(f"buffer_store_dwordx4 v[{ACC+4}:{ACC+7}], v{vL16}, s[28:31], s3 offen offset:1024")
    stamp_mid(e, 1)
    stamp_end(e, 1, 12)
    e("s_endpgm")
    e.label(f"{k}_orole")
    sTQ, sHEAD = sDQ, sFQ
    e(f"s_sub_u32 s{sI}, s{sI}, 22")
    e(f"s_lshr_b32 s{sTQ}, s{sX}, 1")
    e(f"s_lshl_b32 s{sTQ}, s{sTQ}, 1")
    e(f"s_lshr_b32 s3, s{sI}, 2")
    e(f"s_add_u32 s{sTQ}, s{sTQ}, s3")
    e(f"s_and_b32 s{sHEAD}, s{sX}, 1")
    e(f"s_lshl_b32 s{sHEAD}, s{sHEAD}, 2")
    e(f"s_and_b32 s3, s{sI}, 3")
    e(f"s_add_u32 s{sHEAD}, s{sHEAD}, s3")
    e(f"s_lshl_b32 s{sHEAD}, s{sHEAD}, 2")
    e(f"s_add_u32 s{sHEAD}, s{sHEAD}, s{sW}")
    e(f"v_lshlrev_b32 v6, 4, v{vG}")
    e("s_waitcnt lgkmcnt(0)")
    srd(e, 16, 12, WS_USED)
    KP = 16
    ZZ = 144
    PQ = 160
    e(f"s_lshl_b32 s{sT0}, s{sHEAD}, 15")
    e(f"s_add_u32 s{sT0}, s{sT0}, {WS_KVP}")
    for tb in range(16):
        if tb % 2 == 0 and tb: e(f"s_add_u32 s{sT0}, s{sT0}, 4096")
        for sg in range(2):
            b = KP + 8*tb + 4*sg
            e(f"buffer_load_dwordx4 v[{b}:{b+3}], v{vL16}, s[16:19], s{sT0} offen offset:{(tb % 2)*2048 + sg*1024}")
    e(f"v_lshl_add_u32 v6, v{vC}, 7, v6")
    e(f"s_lshl_b32 s3, s{sHEAD}, 11")
    e(f"s_add_u32 s3, s3, {WS_ZP}")
    e(f"buffer_load_dwordx4 v[{ZZ}:{ZZ+3}], v6, s[16:19], s3 offen")
    e(f"buffer_load_dwordx4 v[{ZZ+4}:{ZZ+7}], v6, s[16:19], s3 offen offset:64")
    e(f"s_lshl_b32 s{sT0}, s{sTQ}, 19")
    e(f"s_lshl_b32 s3, s{sHEAD}, 10")
    e(f"s_add_u32 s{sT0}, s{sT0}, s3")
    e(f"s_add_u32 s{sT0}, s{sT0}, {WS_PHQ}")
    for t in range(16):
        e(f"s_add_u32 s3, s{sT0}, {t*32768}")
        e(f"buffer_load_dwordx4 v[{PQ+4*t}:{PQ+4*t+3}], v{vL16}, s[16:19], s3 offen")
    for tb in range(1, 16):
        e(f"s_waitcnt vmcnt({18 + 2*(15-tb)})")
        for i in range(8): e(f"v_add_f32 v{KP+i}, v{KP+i}, v{KP+8*tb+i}")
    e("s_waitcnt vmcnt(16)")
    for sh in (8, 4, 2, 1):
        for i in range(8):
            e(f"v_add_f32_dpp v{ZZ+i}, v{ZZ+i}, v{ZZ+i} row_ror:{sh} row_mask:0xf bank_mask:0xf")
    KA, ZA = 8, 12
    for i in range(4):
        e(f"v_cvt_pk_bf16_f32 v{KA+i}, v{KP+2*i}, v{KP+2*i+1}")
        e(f"v_cvt_pk_bf16_f32 v{ZA+i}, v{ZZ+2*i}, v{ZZ+2*i+1}")
    stamp_mid(e, 0)
    e(f"s_lshl_b32 s{sT0}, s{sTQ}, 18")
    e(f"s_lshr_b32 s3, s{sHEAD}, 1")
    e(f"s_lshl_b32 s3, s3, 10")
    e(f"s_add_u32 s{sT0}, s{sT0}, s3")
    e(f"s_and_b32 s3, s{sHEAD}, 1")
    e(f"s_lshl_b32 s3, s3, 3")
    e(f"s_add_u32 s{sT0}, s{sT0}, s3")
    e(f"s_add_u32 s{sT0}, s{sT0}, {WS_O}")
    NUM = 16
    for t in range(16):
        e(f"s_waitcnt vmcnt({15-t})")
        b = f"v[{PQ+4*t}:{PQ+4*t+3}]"
        e(f"v_mfma_f32_16x16x32_bf16 v[{NUM+8*t}:{NUM+8*t+3}], v[{KA}:{KA+3}], {b}, 0")
        e(f"v_mfma_f32_16x16x32_bf16 v[{NUM+8*t+4}:{NUM+8*t+7}], v[{ZA}:{ZA+3}], {b}, 0")
    for t in range(16):
        n = NUM + 8*t
        e(f"v_add_f32 v{n+4}, {f32(1e-6)}, v{n+4}")
        e(f"v_rcp_f32 v{n+4}, v{n+4}")
        e(f"s_add_u32 s3, s{sT0}, {t*16384}")
        for r in range(4): e(f"v_mul_f32 v{n+r}, v{n+r}, v{n+4}")
        e(f"v_cvt_pk_bf16_f32 v{n+6}, v{n}, v{n+1}")
        e(f"v_cvt_pk_bf16_f32 v{n+7}, v{n+2}, v{n+3}")
        e(f"buffer_store_dwordx2 v[{n+6}:{n+7}], v{vL16}, s[16:19], s3 offen")
    stamp_mid(e, 1)
    stamp_end(e, 1, 12)
    e.label(f"{k}_done")
    e("s_endpgm")
    return k, 240, 256, K2_LDS, 256

K3_RED = 65536
K3_LDS = 131072
def gen_k3(e):
    k = "k3_kernel"
    e.raw(f".globl {k}\n.p2align 8\n.type {k},@function\n{k}:")
    stamp_start(e)
    e("s_cmp_ge_u32 s2, 256")
    e(f"s_cbranch_scc1 {k}_done")
    e("s_load_dwordx2 s[4:5], s[0:1], 0")
    e("s_load_dwordx2 s[6:7], s[0:1], 24")
    e("s_load_dwordx4 s[8:11], s[0:1], 56")
    e("s_load_dwordx2 s[14:15], s[0:1], 72")
    e("s_load_dwordx2 s[12:13], s[0:1], 88")
    sW, sSQ, sDQ, sROT, sJ, sFO, sTO, sFB, sTB, sT0, sT1, sM0, sIT = range(48, 61)
    e("v_mov_b32 v255, v0")
    e("v_and_b32 v1, 63, v0")
    e("v_lshrrev_b32 v2, 6, v0")
    e(f"v_readfirstlane_b32 s{sW}, v2")
    e(f"s_and_b32 s{sSQ}, s2, 7")
    e(f"s_lshl_b32 s{sSQ}, s{sSQ}, 2")
    e(f"s_lshr_b32 s3, s2, 6")
    e(f"s_add_u32 s{sSQ}, s{sSQ}, s3")
    e(f"s_lshl_b32 s{sROT}, s3, 2")
    e(f"s_bfe_u32 s{sDQ}, s2, {3 | (3 << 16)}")
    e(f"s_lshl_b32 s3, s{sDQ}, 1")
    e(f"s_add_u32 s{sROT}, s{sROT}, s3")
    vG, vC, vL16, vR4, vC4 = 3, 4, 5, 6, 7
    e(f"v_lshrrev_b32 v{vG}, 4, v1")
    e(f"v_and_b32 v{vC}, 15, v1")
    e(f"v_lshlrev_b32 v{vL16}, 4, v1")
    e(f"v_bfe_u32 v{vR4}, v1, 2, 2")
    e(f"v_and_b32 v{vC4}, 3, v1")
    vFO, vTD, vTR = 8, 12, 16
    vT = 20
    vX, vB2 = 24, 32
    vXO = 33
    YR, SR = 64, 128
    RING = 144
    TRB = 208
    e(f"s_lshl_b32 s{sM0}, s{sW}, 14")
    e(f"v_lshlrev_b32 v{vT}, 1, v{vG}")
    e(f"v_and_b32 v{vT+1}, 7, v1")
    e(f"v_xor_b32 v{vT}, v{vT}, v{vT+1}")
    e(f"v_lshlrev_b32 v{vT}, 4, v{vT}")
    e(f"v_lshrrev_b32 v{vT+1}, 3, v1")
    e(f"v_lshl_add_u32 v{vT+2}, v{vG}, 2, v{vR4}")
    e(f"v_bfe_u32 v{vT+3}, v{vT+2}, 1, 2")
    e(f"v_lshlrev_b32 v{vT+2}, 7, v{vT+2}")
    e(f"v_lshl_add_u32 v{vT+2}, v2, 14, v{vT+2}")
    e(f"v_lshl_add_u32 v{vXO}, v2, 4, v{vC}")
    e(f"v_lshlrev_b32 v{vB2}, 1, v{vXO}")
    e(f"v_lshlrev_b32 v{vXO}, 10, v{vXO}")
    e(f"v_lshl_add_u32 v{vXO}, v{vG}, 4, v{vXO}")
    sXO = 62
    e(f"s_lshl_b32 s{sXO}, s{sSQ}, 16")
    e(f"s_lshl_b32 s3, s{sDQ}, 7")
    e(f"s_add_u32 s{sXO}, s{sXO}, s3")
    e("s_waitcnt lgkmcnt(0)")
    srd(e, 24, 4, S*D*2)
    srd(e, 28, 14, S*D*2)
    srd(e, 32, 10, S*2)
    e(f"s_cmp_eq_u32 s{sW}, 3")
    e(f"s_cbranch_scc1 {k}_g4")

    def body(g4):
        lab = f"{k}_g4l" if g4 else f"{k}_g3l"
        pitch = 1024 if g4 else 4096
        def acc(q, j):
            if g4 and q == 0: return SR + 4*j
            return YR + 16*q + 4*j
        if g4:
            srd(e, 16, 12, 128*16*1024, WS_O)
            srd(e, 20, 6, D*D*2)
            for q in range(4):
                e(f"v_add_u32 v{vFO+q}, {(q ^ 3)*16384}, v{vL16}")
            e(f"s_lshl_b32 s{sFB}, s{sSQ}, 16")
            e(f"s_lshl_b32 s{sTB}, s{sDQ}, 7")
            e(f"v_lshlrev_b32 v{vT+3}, 1, v{vT+3}")
            e(f"v_xor_b32 v{vT+3}, v{vT+3}, v{vC4}")
            e(f"v_lshl_add_u32 v{vTR}, v{vT+3}, 4, v{vT+2}")
            e(f"v_xor_b32 v{vTR+1}, 64, v{vTR}")
        else:
            srd(e, 16, 12, 32*43*1024, WS_U)
            srd(e, 20, 8, F*S*2)
            for j in range(4):
                e(f"v_add_u32 v{vFO+j}, {j*43*1024}, v{vL16}")
            e(f"s_mul_i32 s{sFB}, s{sDQ}, {4*43*1024}")
            e(f"s_lshl_b32 s{sTB}, s{sSQ}, 7")
            e(f"v_xor_b32 v{vT+3}, v{vT+3}, v2")
            e(f"v_lshl_add_u32 v{vT+2}, v{vC4}, 3, v{vT+2}")
            e(f"v_lshl_add_u32 v{vTR}, v{vT+3}, 5, v{vT+2}")
            for q in range(1, 4):
                e(f"v_xor_b32 v{vTR+q}, {q*32}, v{vTR}")
        e(f"s_mov_b32 s3, {pitch}")
        e(f"v_mad_u32_u24 v{vTD}, v{vT+1}, s3, v{vT}")
        for n in range(1, 4):
            e(f"v_add_u32 v{vTD+n}, {n*(8*pitch - 1024)}, v{vTD}")
        for q in range(4):
            for j in range(4):
                for r in range(4): e(f"v_mov_b32 v{acc(q, j)+r}, 0")
        def loads(slot):
            pre = [f"s_add_u32 s3, s{sJ}, s{sROT}", "s_and_b32 s3, s3, 15", f"s_add_u32 s{sJ}, s{sJ}, 1"]
            if g4:
                pre += [f"s_lshl_b32 s{sFO}, s3, 10", f"s_add_u32 s{sFO}, s{sFO}, s{sFB}",
                        f"s_lshl_b32 s{sTO}, s3, 15", f"s_add_u32 s{sTO}, s{sTO}, s{sTB}"]
            else:
                pre += ["s_mul_i32 s3, s3, 3", f"s_add_u32 s3, s3, s{sW}",
                        f"s_lshl_b32 s{sFO}, s3, 10", f"s_add_u32 s{sFO}, s{sFO}, s{sFB}",
                        f"s_lshl_b32 s{sTO}, s3, 17", f"s_add_u32 s{sTO}, s{sTO}, s{sTB}",
                        "s_cmp_lt_u32 s3, 43", f"s_cselect_b32 s{sFO}, s{sFO}, {OOB}"]
            pre += [f"s_add_u32 m0, s{sM0}, {slot*4096}"]
            L = []
            for n in range(4):
                L.append([f"buffer_load_dwordx4 v{vTD+n}, s[20:23], s{sTO} offen offset:{n*1024} lds"])
            for j in range(4):
                b = RING + 16*slot + 4*j
                L.append([f"buffer_load_dwordx4 v[{b}:{b+3}], v{vFO+j}, s[16:19], s{sFO} offen"])
            L[0] = pre + L[0]
            return L
        def trreads(slot, buf):
            L = []
            for i in range(4):
                for h in range(2):
                    b = TRB + 16*buf + 4*i + 2*h
                    if g4: L.append(f"ds_read_b64_tr_b16 v[{b}:{b+1}], v{vTR + (i >> 1)} offset:{slot*4096 + h*2048 + (i & 1)*8}")
                    else:  L.append(f"ds_read_b64_tr_b16 v[{b}:{b+1}], v{vTR + i} offset:{slot*4096 + h*2048}")
            return L
        e(f"s_mov_b32 s{sJ}, 0")
        for sl in range(3):
            for g in loads(sl):
                for t in g: e(t)
        def step(slot, vm, nxt):
            e(f"s_waitcnt vmcnt({vm})")
            for t in trreads(slot, 0): e(t)
            G = loads((slot + 3) % 4) if nxt else []
            for _ in range(2):
                if G:
                    for t in G.pop(0): e(t)
            n = 0
            for i in range(4):
                e(f"s_waitcnt lgkmcnt({2*(3-i)})")
                for j in range(4):
                    tr = f"v[{TRB+4*i}:{TRB+4*i+3}]"; fr = f"v[{RING+16*slot+4*j}:{RING+16*slot+4*j+3}]"
                    if g4:
                        c_ = acc(j, i); e(f"v_mfma_f32_16x16x32_bf16 v[{c_}:{c_+3}], {tr}, {fr}, v[{c_}:{c_+3}]")
                    else:
                        c_ = acc(i, j); e(f"v_mfma_f32_16x16x32_bf16 v[{c_}:{c_+3}], {fr}, {tr}, v[{c_}:{c_+3}]")
                    if n % 2 == 1 and G:
                        for t in G.pop(0): e(t)
                    n += 1
        e(f"s_mov_b32 s{sIT}, 0")
        e.label(lab)
        for sl in range(4): step(sl, 16, True)
        e(f"s_add_u32 s{sIT}, s{sIT}, 1")
        e(f"s_cmp_lt_u32 s{sIT}, 3")
        e(f"s_cbranch_scc1 {lab}")
        step(0, 16, True)
        e(f"buffer_load_dwordx4 v[{vX}:{vX+3}], v{vXO}, s[24:27], s{sXO} offen")
        e(f"buffer_load_dwordx4 v[{vX+4}:{vX+7}], v{vXO}, s[24:27], s{sXO} offen offset:64")
        e(f"s_lshl_b32 s3, s{sSQ}, 7")
        e(f"buffer_load_ushort v{vB2}, v{vB2}, s[32:35], s3 offen")
        step(1, 19, False)
        step(2, 11, False)
        step(3, 3, False)
        stamp_mid(e, 0)
        e(f"v_lshl_add_u32 v{vT}, v2, 12, v{vL16}")
        e(f"v_lshl_add_u32 v{vT}, v2, 14, v{vT}")
        e(f"v_add_u32 v{vT}, {K3_RED}, v{vT}")
        for q in range(1, 4):
            e(f"v_xor_b32 v{vT+q}, {q*16384}, v{vT}")
        for q in range(1, 4):
            for j in range(4):
                c_ = acc(q, j)
                e(f"ds_write_b128 v{vT+q}, v[{c_}:{c_+3}] offset:{j*1024}")
        e(f"v_lshl_add_u32 v{vT}, v2, 14, v{vL16}")
        e(f"v_add_u32 v{vT}, {K3_RED}, v{vT}")
        if not g4:
            e(f"s_add_u32 s3, s{sW}, 1\ns_cmp_eq_u32 s3, 3\ns_cselect_b32 s3, 0, s3\ns_lshl_b32 s{sT0}, s3, 12")
            e(f"s_add_u32 s3, s3, 1\ns_cmp_eq_u32 s3, 3\ns_cselect_b32 s3, 0, s3\ns_lshl_b32 s{sT1}, s3, 12")
            e(f"v_add_u32 v{vFO}, s{sT0}, v{vT}")
            e(f"v_add_u32 v{vFO+1}, s{sT1}, v{vT}")
        e("s_waitcnt lgkmcnt(0)")
        e("s_barrier")
        if g4:
            for j in range(4): e(f"ds_read_b128 v[{YR+4*j}:{YR+4*j+3}], v{vT} offset:{j*1024}")
            for q in range(2):
                for j in range(4): e(f"ds_read_b128 v[{RING+16*q+4*j}:{RING+16*q+4*j+3}], v{vT} offset:{(q+1)*4096 + j*1024}")
        else:
            for j in range(4): e(f"ds_read_b128 v[{SR+4*j}:{SR+4*j+3}], v{vT} offset:{3*4096 + j*1024}")
            for q in range(2):
                for j in range(4): e(f"ds_read_b128 v[{RING+16*q+4*j}:{RING+16*q+4*j+3}], v{vFO+q} offset:{j*1024}")
    body(False)
    e(f"s_branch {k}_epi")
    e.label(f"{k}_g4")
    body(True)
    e.label(f"{k}_epi")
    e("s_waitcnt vmcnt(0)")
    e(f"v_lshlrev_b32 v{vB2}, 16, v{vB2}")
    e("s_waitcnt lgkmcnt(4)")
    for i in range(16): e(f"v_add_f32 v{YR+i}, v{YR+i}, v{RING+i}")
    e("s_waitcnt lgkmcnt(0)")
    for i in range(16): e(f"v_add_f32 v{RING+16+i}, v{RING+16+i}, v{vB2}")
    for i in range(16): e(f"v_add_f32 v{YR+i}, v{YR+i}, v{RING+16+i}")
    T = RING
    e(f"s_mov_b32 s3, {f32(-LOG2E)}")
    for i in range(16): e(f"v_mul_f32 v{T+i}, s3, v{YR+i}")
    for i in range(16): e(f"v_exp_f32 v{T+i}, v{T+i}")
    for i in range(16): e(f"v_add_f32 v{T+i}, 1.0, v{T+i}")
    for i in range(16): e(f"v_rcp_f32 v{T+i}, v{T+i}")
    for i in range(16): e(f"v_mul_f32 v{YR+i}, v{YR+i}, v{SR+i}")
    for i in range(8):
        e(f"v_lshlrev_b32 v{T+16+2*i}, 16, v{vX+i}")
        e(f"v_and_b32 v{T+16+2*i+1}, 0xffff0000, v{vX+i}")
    for i in range(16): e(f"v_fma_f32 v{YR+i}, v{YR+i}, v{T+i}, v{T+16+i}")
    for i in range(8): e(f"v_cvt_pk_bf16_f32 v{vX+i}, v{YR+2*i}, v{YR+2*i+1}")
    e(f"buffer_store_dwordx4 v[{vX}:{vX+3}], v{vXO}, s[28:31], s{sXO} offen")
    e(f"buffer_store_dwordx4 v[{vX+4}:{vX+7}], v{vXO}, s[28:31], s{sXO} offen offset:64")
    stamp_mid(e, 1)
    stamp_end(e, 2, 12)
    e.label(f"{k}_done")
    e("s_endpgm")
    return k, 256, 256, K3_LDS, 256

def kd(name, vgpr):
    return f""".p2align 6
.amdhsa_kernel {name}
  .amdhsa_next_free_vgpr {vgpr}
  .amdhsa_next_free_sgpr 102
  .amdhsa_accum_offset {min(256, (vgpr+3)//4*4)}
  .amdhsa_group_segment_fixed_size 0
  .amdhsa_kernarg_size 96
  .amdhsa_user_sgpr_count 2
  .amdhsa_user_sgpr_kernarg_segment_ptr 1
  .amdhsa_system_sgpr_workgroup_id_x 1
.end_amdhsa_kernel"""

def build(path, stamps=False):
    global STAMPS
    STAMPS = stamps
    e = Emitter()
    ks = [g(e) for g in (gen_k1, gen_k2, gen_k3)]
    hdr = open(f"cdna_kernels/{NAME}.s.ref").read().split("; Override")[0]
    s = hdr + "".join(f"; @launch kernel={k} grid=({g},1,1) block=({b},1,1) lds={l}\n" for k, g, b, l, v in ks)
    s += '.amdgcn_target "amdgcn-amd-amdhsa--gfx950"\n.text\n' + e.text() + '\n.section .rodata,"a"\n' + "\n".join(kd(k, v) for k, g, b, l, v in ks) + "\n"
    open(path, "w").write(s)

if __name__ == "__main__":
    build(sys.argv[1], stamps=len(sys.argv) > 2 and sys.argv[2] == "stamps")
```

```python
import sys, struct
sys.path.insert(0, "gen")
from emit import *

NAME = "recurrent_scan__linear_kernel_hedgehog__mixer_token_mlp__prompt"
S, D, H, F = 2048, 512, 32, 1376
WS_HT, WS_PHQ, WS_KVP, WS_ZP, WS_U, WS_O, WS_W1F = 0x000000, 0x200000, 0x600000, 0x700000, 0x800000, 0xA00000, 0xC00000
WS_USED = 0x1200000
WS_STAMP = 0x1800000
LOG2E = 1.4426950408889634
def f32(x): return "0x%08x" % struct.unpack("<I", struct.pack("<f", x))[0]
OOB = 0x7f000000

class Cnt:
    def __init__(self, e, name, mx): self.e = e; self.name = name; self.q = []; self.mx = mx
    def issue(self, tag): self.q.append(tag)
    def wait(self, tag):
        if tag not in self.q: return
        i = len(self.q) - 1 - self.q[::-1].index(tag)
        n = len(self.q) - 1 - i
        self.e(f"s_waitcnt {self.name}({min(n, self.mx)})")
        self.q = self.q[i+1:] if n <= self.mx else self.q[len(self.q) - self.mx:]
    def wait_all(self):
        self.e(f"s_waitcnt {self.name}(0)"); self.q = []
    def reset(self): self.q = []

def srd(e, d, base, nbytes, off=0):
    if off:
        e(f"s_add_u32 s{d}, s{base}, {off}")
        e(f"s_addc_u32 s{d+1}, s{base+1}, 0")
    else:
        e(f"s_mov_b32 s{d}, s{base}")
        e(f"s_mov_b32 s{d+1}, s{base+1}")
    e(f"s_mov_b32 s{d+2}, {nbytes}")
    e(f"s_mov_b32 s{d+3}, 0x20000")

def interleave(*lists):
    out = []
    n = max(len(l) for l in lists)
    for i in range(n):
        for l in lists:
            if i < len(l): out.append(l[i])
    return out

STAMPS = False
def stamp_start(e):
    if STAMPS:
        e("s_memrealtime s[96:97]")
def stamp_mid(e, k):
    if STAMPS:
        e(f"s_memrealtime s[{92+2*k}:{93+2*k}]")
def stamp_end(e, kidx, wsptr):
    if STAMPS == "dbg":
        e("s_waitcnt vmcnt(0)")
        e("s_memrealtime s[98:99]")
        e("s_load_dwordx2 s[86:87], s[0:1], 80")
        e("s_waitcnt lgkmcnt(0)")
        e(f"s_sub_u32 s88, s86, {kidx*512}\ns_subb_u32 s89, s87, 0\ns_mov_b32 s90, 256\ns_mov_b32 s91, 0x20000")
        e("s_not_b32 s96, s96")
        e("v_mov_b32 v4, s96\nv_mov_b32 v5, s92\nv_mov_b32 v6, s94\nv_mov_b32 v7, s98")
        e("v_mov_b32 v8, 0")
        e("s_mov_b64 exec, 1")
        for i in range(4):
            e(f"buffer_atomic_umax v{4+i}, v8, s[88:91], 0 offen offset:{kidx*16 + i*4}")
        return
    if STAMPS:
        e("s_waitcnt vmcnt(0)")
        e("s_memrealtime s[98:99]")
        e("s_waitcnt lgkmcnt(0)")
        srd(e, 88, wsptr, 0x100000, WS_STAMP + kidx*0x10000)
        e("v_mov_b32 v4, s96\nv_mov_b32 v5, s92\nv_mov_b32 v6, s94\nv_mov_b32 v7, s98")
        e("s_lshl_b32 s3, s2, 6")
        e("s_lshl_b32 s87, s48, 4\nv_mov_b32 v8, s87")
        e("s_mov_b64 exec, 1")
        e("buffer_store_dwordx4 v[4:7], v8, s[88:91], s3 offen")

def softmax_pair(P0, P1, O0, O1, T, sL, sNL):
    L = []
    a = L.append
    m0, n0, m1, n1, f, g, h = T, T+1, T+2, T+3, T+4, T+5, T+6
    E = T + 8
    for (P, m, n) in ((P0, m0, n0), (P1, m1, n1)):
        a(f"v_max3_f32 v{m}, v{P}, v{P+1}, v{P+2}")
        a(f"v_max3_f32 v{n}, -v{P}, -v{P+1}, -v{P+2}")
        a(f"v_max_f32 v{m}, v{m}, v{P+3}")
        a(f"v_max_f32_e64 v{n}, v{n}, -v{P+3}")
    def network(op, mid):
        a(f"v_permlane32_swap_b32 v{m0}, v{n0}")
        a(f"v_permlane32_swap_b32 v{m1}, v{n1}")
        a(f"{op} v{m0}, v{m0}, v{n0}")
        a(f"{op} v{m1}, v{m1}, v{n1}")
        a(f"v_permlane16_swap_b32 v{m0}, v{m1}")
        a(f"{op} v{m0}, v{m0}, v{m1}")
        a(mid.format(r=f"v{m0}"))
        a(f"v_mov_b32 v{m1}, v{m0}")
        a(f"v_permlane16_swap_b32 v{m0}, v{m1}")
        a(f"v_mov_b32 v{n0}, v{m0}")
        a(f"v_mov_b32 v{n1}, v{m1}")
        a(f"v_permlane32_swap_b32 v{m0}, v{n0}")
        a(f"v_permlane32_swap_b32 v{m1}, v{n1}")
    network("v_max_f32", "v_mul_f32 {r}, " + f"s{sNL}" + ", {r}")
    for ti, (P, m, n) in enumerate(((P0, m0, n0), (P1, m1, n1))):
        for r in range(4):
            a(f"v_fma_f32 v{E+8*ti+r}, v{P+r}, s{sL}, v{m}")
            a(f"v_fma_f32 v{E+8*ti+4+r}, -v{P+r}, s{sL}, v{n}")
    for i in range(16):
        a(f"v_exp_f32 v{E+i}, v{E+i}")
    for ti, (m, n) in enumerate(((m0, n0), (m1, n1))):
        for sg, d in enumerate((m, n)):
            b = E + 8*ti + 4*sg
            a(f"v_add_f32 v{d}, v{b}, v{b+1}")
            a(f"v_add_f32 v{f+sg}, v{b+2}, v{b+3}")
            a(f"v_add_f32 v{d}, v{d}, v{f+sg}")
    network("v_add_f32", "v_rcp_f32 {r}, {r}")
    for ti, (O, m, n) in enumerate(((O0, m0, n0), (O1, m1, n1))):
        for sg, d in enumerate((m, n)):
            b = E + 8*ti + 4*sg
            for r in range(4):
                a(f"v_mul_f32 v{b+r}, v{b+r}, v{d}")
            a(f"v_cvt_pk_bf16_f32 v{O+2*sg}, v{b}, v{b+1}")
            a(f"v_cvt_pk_bf16_f32 v{O+2*sg+1}, v{b+2}, v{b+3}")
    return L

K1_XS = 16384
K1_WB = 3*16384
K1_WS = 16384
K1_ST = K1_WB + 3*K1_WS
K1_HX = K1_ST + 2048
K1_W1 = K1_HX + 16384
K1_LDS = K1_W1 + 44032

def gen_k1(e):
    k = "k1_kernel"
    e.raw(f".globl {k}\n.p2align 8\n.type {k},@function\n{k}:")
    stamp_start(e)
    e("s_cmp_ge_u32 s2, 256")
    e(f"s_cbranch_scc1 {k}_done")
    e("s_load_dwordx4 s[4:7], s[0:1], 0")
    e("s_load_dwordx2 s[8:9], s[0:1], 16")
    e("s_load_dwordx2 s[10:11], s[0:1], 40")
    e("s_load_dwordx2 s[12:13], s[0:1], 88")
    sW, sTB, sHG, sROLE, sROT, sST, sXO, sWO, sM0X, sM0W, sDEL, sL, sNL, sT0, sT1, sHEAD, sSLOT = range(48, 65)
    e("v_and_b32 v1, 63, v0")
    e("v_lshrrev_b32 v2, 6, v0")
    e(f"v_readfirstlane_b32 s{sW}, v2")
    e(f"s_and_b32 s{sT0}, s2, 7")
    e(f"s_lshr_b32 s{sT1}, s2, 3")
    e(f"s_and_b32 s{sROLE}, s{sT1}, 1")
    e(f"s_lshr_b32 s{sT1}, s{sT1}, 1")
    e(f"s_lshr_b32 s{sTB}, s{sT0}, 1")
    e(f"s_lshl_b32 s{sTB}, s{sTB}, 2")
    e(f"s_lshr_b32 s3, s{sT1}, 2")
    e(f"s_add_u32 s{sTB}, s{sTB}, s3")
    e(f"s_and_b32 s{sHG}, s{sT0}, 1")
    e(f"s_lshl_b32 s{sHG}, s{sHG}, 2")
    e(f"s_and_b32 s3, s{sT1}, 3")
    e(f"s_add_u32 s{sHG}, s{sHG}, s3")
    e(f"s_add_u32 s{sROT}, s{sHG}, s{sTB}")
    e(f"s_and_b32 s{sROT}, s{sROT}, 3")
    e(f"s_lshl_b32 s{sROT}, s{sROT}, 1")
    e(f"s_add_u32 s{sROT}, s{sROT}, s{sROLE}")
    e(f"s_lshl_b32 s{sHEAD}, s{sHG}, 2")
    e(f"s_add_u32 s{sHEAD}, s{sHEAD}, s{sW}")
    e(f"s_mov_b32 s{sL}, {f32(LOG2E)}")
    e(f"s_mov_b32 s{sNL}, {f32(-LOG2E)}")
    vG, vC, vR4, vC4, vL3, vL7 = 3, 4, 5, 6, 7, 8
    e(f"v_lshrrev_b32 v{vG}, 4, v1")
    e(f"v_and_b32 v{vC}, 15, v1")
    e(f"v_bfe_u32 v{vR4}, v1, 2, 2")
    e(f"v_and_b32 v{vC4}, 3, v1")
    e(f"v_lshrrev_b32 v{vL3}, 3, v1")
    e(f"v_and_b32 v{vL7}, 7, v1")
    vXD, vWD, vXA, vWA = 10, 14, 18, 26
    vT = 28
    e(f"v_lshl_add_u32 v{vT}, v2, 5, v{vL3}")
    for n in range(4):
        e(f"v_xor_b32 v{vT+1}, {4*(n & 1)}, v{vG}")
        e(f"v_xor_b32 v{vT+1}, v{vT+1}, v{vL7}")
        e(f"v_lshlrev_b32 v{vT+1}, 4, v{vT+1}")
        e(f"v_add_u32 v{vT+2}, {7*n}, v{vT}")
        e(f"v_lshl_add_u32 v{vXD+n}, v{vT+2}, 10, v{vT+1}")
    e(f"v_lshl_add_u32 v{vT}, v2, 4, v{vL3}")
    e(f"v_and_b32 v{vT+3}, 1, v{vG}")
    e(f"v_lshlrev_b32 v{vT+3}, 1, v{vT+3}")
    e(f"v_xor_b32 v{vT+3}, v{vT+3}, v{vL7}")
    e("s_movk_i32 s3, 3072")
    for a in range(2):
        for n in range(2):
            i = 2*a + n
            e(f"v_xor_b32 v{vT+1}, {4*n}, v{vT+3}")
            e(f"v_lshlrev_b32 v{vT+1}, 4, v{vT+1}")
            e(f"v_add_u32 v{vT+2}, {8*n}, v{vT}")
            e(f"v_mad_u32_u24 v{vWD+i}, v{vT+2}, s3, v{vT+1}")
            cst = a*1024 - i*1024 + 2048
            if cst: e(f"v_add_u32 v{vWD+i}, {cst}, v{vWD+i}")
    e(f"v_lshrrev_b32 v{vT}, 1, v{vC}")
    e(f"v_xor_b32 v{vT}, v{vT}, v{vG}")
    e(f"v_lshlrev_b32 v{vT}, 4, v{vT}")
    e(f"v_lshl_add_u32 v{vT}, v{vC}, 7, v{vT}")
    e(f"v_lshl_add_u32 v{vT}, v2, 12, v{vT}")
    for j in range(4):
        for kk in range(2):
            e(f"v_xor_b32 v{vXA+2*j+kk}, {j*4096 + kk*64}, v{vT}")
    e(f"v_and_b32 v{vT}, 1, v{vG}")
    e(f"v_lshrrev_b32 v{vT+1}, 1, v{vR4}")
    e(f"v_lshl_or_b32 v{vT+1}, v{vT}, 1, v{vT+1}")
    e(f"v_xor_b32 v{vT+1}, v{vT+1}, v2")
    e(f"v_lshlrev_b32 v{vT+1}, 5, v{vT+1}")
    e(f"v_lshl_add_u32 v{vT+1}, v{vC4}, 3, v{vT+1}")
    e(f"v_lshl_add_u32 v{vT}, v{vT}, 3, v{vR4}")
    e(f"v_lshl_add_u32 v{vT+1}, v{vT}, 7, v{vT+1}")
    e(f"v_lshrrev_b32 v{vT}, 1, v{vG}")
    e(f"v_lshl_add_u32 v{vT+1}, v{vT}, 12, v{vT+1}")
    e(f"v_add_u32 v{vWA}, {K1_WB}, v{vT+1}")
    accA, accB, csA, csB, rs, sq = 64, 96, 128, 132, 136, 144
    XF, WF, ONES = 160, 224, 240
    vPH, vID = 244, 246
    vPL = 248
    for r in range(64, 146): e(f"v_mov_b32 v{r}, 0")
    for r in range(4): e(f"v_mov_b32 v{ONES+r}, 0x3f803f80")
    e("s_waitcnt lgkmcnt(0)")
    srd(e, 16, 4, S*D*2)
    srd(e, 20, 6, D*3*D*2)
    srd(e, 24, 8, H*16*16*2)
    srd(e, 28, 10, S*F*2)
    srd(e, 32, 12, WS_USED)
    sXB, sWB = 66, 67
    e(f"s_lshl_b32 s{sXB}, s{sTB}, 17")
    e(f"s_lshl_b32 s{sWB}, s{sHG}, 7")
    e(f"s_cmp_eq_u32 s{sROLE}, 0")
    e(f"s_cselect_b32 s3, 1024, 0")
    e(f"s_add_u32 s{sWB}, s{sWB}, s3")
    e("s_sub_u32 s20, s20, 2048")
    e("s_subb_u32 s21, s21, 0")
    e(f"s_mov_b32 s22, {D*3*D*2 + 2048}")
    e(f"s_lshl_b32 s{sM0X}, s{sW}, 12")
    e(f"s_add_u32 s{sM0W}, s{sM0X}, {K1_WB}")

    def dma_list(nW, sStage, slot_s):
        pre = [f"s_lshl_b32 s{sXO}, s{sStage}, 7", f"s_add_u32 s{sXO}, s{sXO}, s{sXB}",
               f"s_mul_i32 s{sWO}, s{sStage}, {64*3072}", f"s_add_u32 s{sWO}, s{sWO}, s{sWB}"]
        G = []
        for n in range(4):
            g = []
            if n == 0: g += pre + [f"s_add_u32 m0, s{sM0X}, s{slot_s}"]
            g.append(f"buffer_load_dwordx4 v{vXD+n}, s[16:19], s{sXO} offen offset:{n*1024} lds")
            G.append(g)
        for i in range(2*nW):
            g = []
            if i == 0: g.append(f"s_add_u32 m0, s{sM0W}, s{slot_s}")
            g.append(f"buffer_load_dwordx4 v{vWD+i}, s[20:23], s{sWO} offen offset:{i*1024} lds")
            G.append(g)
        return G

    sRS = 68
    sISL = 69
    def role_code(role):
        nW = 2 if role == "kv" else 1
        nps = 4 + 2*nW
        lab = f"{k}_{role}"
        e(f"v_lshlrev_b32 v{vT}, 7, v{vG}")
        e(f"v_lshl_add_u32 v{vT}, v{vC}, 1, v{vT}")
        e(f"s_lshl_b32 s3, s{sHEAD}, 9")
        for i in range(4):
            e(f"buffer_load_ushort v{vPL+i}, v{vT}, s[24:27], s3 offen offset:{i*32}")
        for st in range(2):
            e(f"s_add_u32 s{sRS}, s{sROT}, {st}")
            e(f"s_and_b32 s{sRS}, s{sRS}, 7")
            e(f"s_mov_b32 s{sISL}, {st*16384}")
            for g in dma_list(nW, sRS, sISL):
                for t in g: e(t)
        e(f"s_mov_b32 s{sST}, 0")
        e(f"s_mov_b32 s{sSLOT}, 0")
        e(f"s_mov_b32 s{sISL}, {2*16384}")

        def stage(vm_wait, dma, extra=None):
            e(f"s_waitcnt vmcnt({vm_wait})")
            e("s_barrier")
            lg = Cnt(e, "lgkmcnt", 15)
            def rdW(kk):
                for a in range(nW):
                    for h in range(2):
                        e(f"ds_read_b64_tr_b16 v[{WF+8*kk+4*a+2*h}:{WF+8*kk+4*a+2*h+1}], v{vWA} offset:{kk*8192 + a*2048 + h*512}")
                        lg.issue(("W", kk))
            def rdX(kk, t):
                b = XF + 32*kk + 4*t
                e(f"ds_read_b128 v[{b}:{b+3}], v{vXA + 2*(t >> 1) + kk} offset:{(t & 1)*2048}")
                lg.issue(("X", kk, t))
            rdW(0)
            for t in range(8): rdX(0, t)
            G = []
            if dma:
                e(f"s_add_u32 s{sRS}, s{sROT}, s{sST}")
                e(f"s_add_u32 s{sRS}, s{sRS}, 2")
                e(f"s_and_b32 s{sRS}, s{sRS}, 7")
                G = dma_list(nW, sRS, sISL)
            if extra: G = extra
            G = list(G)
            for kk in range(2):
                wa = f"v[{WF+8*kk}:{WF+8*kk+3}]"; wb = f"v[{WF+8*kk+4}:{WF+8*kk+7}]"
                for t in range(8):
                    lg.wait(("X", kk, t))
                    x = f"v[{XF+32*kk+4*t}:{XF+32*kk+4*t+3}]"
                    e(f"v_mfma_f32_16x16x32_bf16 v[{accA+4*t}:{accA+4*t+3}], {wa}, {x}, v[{accA+4*t}:{accA+4*t+3}]")
                    if kk == 0:
                        if t == 0: rdW(1)
                        rdX(1, t)
                    if nW == 2:
                        e(f"v_mfma_f32_16x16x32_bf16 v[{accB+4*t}:{accB+4*t+3}], {x}, {wb}, v[{accB+4*t}:{accB+4*t+3}]")
                    if t < 2:
                        e(f"v_mfma_f32_16x16x32_bf16 v[{rs+4*t}:{rs+4*t+3}], v[{ONES}:{ONES+3}], {x}, v[{rs+4*t}:{rs+4*t+3}]")
                        for r in range(4):
                            e(f"v_dot2c_f32_bf16 v{sq+t}, v{XF+32*kk+4*t+r}, v{XF+32*kk+4*t+r}")
                    if t == 2:
                        e(f"v_mfma_f32_16x16x32_bf16 v[{csA}:{csA+3}], {wa}, v[{ONES}:{ONES+3}], v[{csA}:{csA+3}]")
                    if t == 3 and nW == 2:
                        e(f"v_mfma_f32_16x16x32_bf16 v[{csB}:{csB+3}], v[{ONES}:{ONES+3}], {wb}, v[{csB}:{csB+3}]")
                    ng = 1 if len(G) <= (16 - (8*kk + t)) else 2
                    for _ in range(ng):
                        if G:
                            for tx in G.pop(0): e(tx)
            for g in G:
                for tx in g: e(tx)
            e(f"s_add_u32 s{sSLOT}, s{sSLOT}, 1")
            e(f"s_cmp_eq_u32 s{sSLOT}, 3")
            e(f"s_cselect_b32 s{sDEL}, -2, 1")
            e(f"s_cselect_b32 s{sSLOT}, 0, s{sSLOT}")
            e(f"s_lshl_b32 s{sDEL}, s{sDEL}, 14")
            e(f"s_add_u32 s{sISL}, s{sISL}, 16384")
            e(f"s_cmp_eq_u32 s{sISL}, {3*16384}")
            e(f"s_cselect_b32 s{sISL}, 0, s{sISL}")
            for r in list(range(vXA, vXA+8)) + [vWA]:
                e(f"v_add_u32 v{r}, s{sDEL}, v{r}")
        e.label(f"{lab}_loop")
        stage(nps, True)
        e(f"s_add_u32 s{sST}, s{sST}, 1")
        e(f"s_cmp_lt_u32 s{sST}, 6")
        e(f"s_cbranch_scc1 {lab}_loop")
        nextra = 0
        extra = None
        if role == "q":
            extra = []
            vHD = 32
            vW1D = 36
            pre = [f"v_lshl_add_u32 v{vT}, v2, 5, v{vL3}",
                   f"v_and_b32 v{vT+3}, 1, v{vG}", f"v_lshlrev_b32 v{vT+3}, 1, v{vT+3}", f"v_xor_b32 v{vT+3}, v{vT+3}, v{vL7}"]
            for n in range(4):
                pre += [f"v_xor_b32 v{vT+1}, {4*(n & 1)}, v{vT+3}", f"v_lshlrev_b32 v{vT+1}, 4, v{vT+1}",
                        f"v_add_u32 v{vT+2}, {7*n}, v{vT}", f"v_lshl_add_u32 v{vHD+n}, v{vT+2}, 10, v{vT+1}"]
            pre += [f"v_lshlrev_b32 v{vW1D}, 4, v1"]
            for t in pre: e(t)
            g0 = [f"s_lshl_b32 s{sXO}, s{sHG}, 7", f"s_add_u32 s{sXO}, s{sXO}, s{sXB}", f"s_add_u32 m0, s{sM0X}, {K1_HX}"]
            for n in range(4):
                extra.append((g0 if n == 0 else []) + [f"buffer_load_dwordx4 v{vHD+n}, s[16:19], s{sXO} offen offset:{n*1024} lds"])
            sQI = 70
            g1 = [f"s_lshl_b32 s{sQI}, s{sTB}, 3", f"s_add_u32 s{sQI}, s{sQI}, s{sHG}",
                  f"s_mul_i32 s{sWO}, s{sQI}, {16*F*2}", f"s_mul_i32 s3, s{sW}, {11*1024}", f"s_add_u32 s{sWO}, s{sWO}, s3",
                  f"s_add_u32 s{sT0}, s3, {K1_W1}"]
            for i in range(11):
                g = list(g1) if i == 0 else []
                if i % 4 == 0:
                    g += [f"s_add_u32 m0, s{sT0}, {i*1024}"]
                    if i: g += [f"s_add_u32 s{sWO}, s{sWO}, 4096"]
                if i == 10:
                    g += [f"s_cmp_eq_u32 s{sW}, 3", f"s_cselect_b32 s{sWO}, {OOB}, s{sWO}"]
                g.append(f"buffer_load_dwordx4 v{vW1D}, s[28:31], s{sWO} offen offset:{(i % 4)*1024} lds")
                extra.append(g)
            nextra = len(extra)
        stage(nps, False, extra)
        stage(nextra, False)
        stamp_mid(e, 0)
        e(f"v_permlane32_swap_b32 v{sq}, v{sq+1}")
        e(f"v_add_f32 v{sq}, v{sq}, v{sq+1}")
        e(f"v_mov_b32 v{sq+1}, v{sq}")
        e(f"v_permlane16_swap_b32 v{sq}, v{sq+1}")
        e(f"v_add_f32 v{sq}, v{sq}, v{sq+1}")
        e("v_cmp_gt_u32 vcc, 32, v1")
        e(f"v_cndmask_b32 v{vT}, v{rs+4}, v{rs}, vcc")
        e(f"v_mul_f32 v{vT}, {f32(1.0/D)}, v{vT}")
        e(f"v_mul_f32 v{vT+1}, v{vT}, v{vT}")
        e(f"s_mov_b32 s3, {f32(1.0/D)}")
        e(f"v_fma_f32 v{vT+1}, v{sq}, s3, -v{vT+1}")
        e(f"v_max_f32 v{vT+1}, 0, v{vT+1}")
        e(f"v_add_f32 v{vT+2}, {f32(1e-5)}, v{vT+1}")
        e(f"v_rsq_f32 v{vT+2}, v{vT+2}")
        e(f"v_mul_f32_e64 v{vT+3}, -v{vT}, v{vT+2}")
        vS = 40
        e(f"v_lshrrev_b32 v{vS}, 5, v1")
        e(f"v_lshl_add_u32 v{vS}, v{vS}, 4, v{vC}")
        e(f"v_lshl_add_u32 v{vS}, v2, 5, v{vS}")
        e(f"v_lshlrev_b32 v{vS}, 2, v{vS}")
        e(f"v_add_u32 v{vS}, {K1_ST}, v{vS}")
        e(f"ds_write_b32 v{vS}, v{vT+2}")
        e(f"ds_write_b32 v{vS}, v{vT+3} offset:512")
        if role == "q":
            e(f"v_mul_f32 v{vS+1}, v{vT+2}, v{vT+2}")
            e(f"v_mul_f32 v{vS+1}, v{vS+1}, v{vT+1}")
            e(f"v_add_f32 v{vS+1}, {f32(1e-5)}, v{vS+1}")
            e(f"v_rsq_f32 v{vS+1}, v{vS+1}")
            e(f"v_mul_f32 v{vS+1}, v{vS+1}, v{vT+2}")
            e(f"v_mul_f32_e64 v{vS+2}, -v{vT}, v{vS+1}")
            e(f"ds_write_b32 v{vS}, v{vS+1} offset:1024")
            e(f"ds_write_b32 v{vS}, v{vS+2} offset:1536")
        e(f"v_lshl_or_b32 v{vPH}, v{vPL+1}, 16, v{vPL}")
        e(f"v_lshl_or_b32 v{vPH+1}, v{vPL+3}, 16, v{vPL+2}")
        e("s_waitcnt lgkmcnt(0)")
        e("s_barrier")
        CS = XF
        vCB = 41
        e(f"v_lshlrev_b32 v{vCB}, 2, v{vC}")
        e(f"v_lshl_add_u32 v{vCB}, v2, 7, v{vCB}")
        e(f"v_add_u32 v{vCB}, {K1_ST}, v{vCB}")
        for j in range(4):
            e(f"v_xor_b32 v{vT}, {j*128}, v{vCB}")
            for u in range(2):
                t = 2*j + u
                e(f"ds_read2_b32 v[{CS+2*t}:{CS+2*t+1}], v{vT} offset0:{u*16} offset1:{128+u*16}")
        RS_ = XF + 16
        vRB = 42
        if role == "kv":
            e(f"v_lshlrev_b32 v{vRB}, 4, v{vG}")
            e(f"v_lshl_add_u32 v{vRB}, v2, 7, v{vRB}")
            e(f"v_add_u32 v{vRB}, {K1_ST}, v{vRB}")
            e(f"v_lshlrev_b32 v{vT}, 2, v{vG}")
            e(f"v_sub_u32 v{vT}, v{vC}, v{vT}")
            e(f"v_mov_b32 v{vT+1}, 0x3f80")
            e(f"v_mov_b32 v{vT+2}, 0x3f800000")
            for rr in range(2):
                e(f"v_cmp_eq_u32 vcc, {2*rr}, v{vT}")
                e(f"v_cndmask_b32 v{vID+rr}, 0, v{vT+1}, vcc")
                e(f"v_cmp_eq_u32 vcc, {2*rr+1}, v{vT}")
                e(f"v_cndmask_b32 v{vID+rr}, v{vID+rr}, v{vT+2}, vcc")
        e("s_waitcnt lgkmcnt(0)")
        KB = XF + 16
        for t in range(8):
            for r in range(4):
                e(f"v_mul_f32 v{vT+r}, v{csA+r}, v{CS+2*t+1}")
            for r in range(4):
                e(f"v_fma_f32 v{accA+4*t+r}, v{accA+4*t+r}, v{CS+2*t}, v{vT+r}")
            e(f"v_cvt_pk_bf16_f32 v{KB+2*t}, v{accA+4*t}, v{accA+4*t+1}")
            e(f"v_cvt_pk_bf16_f32 v{KB+2*t+1}, v{accA+4*t+2}, v{accA+4*t+3}")
        for t in range(8):
            e(f"v_mfma_f32_16x16x16_bf16 v[{accA+4*t}:{accA+4*t+3}], v[{vPH}:{vPH+1}], v[{KB+2*t}:{KB+2*t+1}], 0")
        PH = XF + 32
        TA, TB_ = 10, 34
        vRB2 = 60
        if role == "kv": e(f"v_mov_b32 v{vRB2}, v{vRB}")
        for half in range(2):
            t0 = 4*half
            la = softmax_pair(accA+4*t0, accA+4*t0+4, PH+4*t0, PH+4*t0+4, TA, sL, sNL)
            lb = softmax_pair(accA+4*t0+8, accA+4*t0+12, PH+4*t0+8, PH+4*t0+12, TB_, sL, sNL)
            for tx in interleave(la, lb): e(tx)
        vL16 = 58
        e(f"v_lshlrev_b32 v{vL16}, 4, v1")
        if role == "q":
            e(f"s_lshl_b32 s{sT0}, s{sTB}, 18")
            e(f"s_lshl_b32 s3, s{sHEAD}, 10")
            e(f"s_add_u32 s{sT0}, s{sT0}, s3")
            e(f"s_add_u32 s{sT0}, s{sT0}, {WS_PHQ}")
            e(f"s_lshl_b32 s{sT1}, s{sW}, 16")
            for t in range(8):
                e(f"s_xor_b32 s3, s{sT1}, {t*32768}")
                e(f"s_add_u32 s3, s3, s{sT0}")
                e(f"buffer_store_dwordx4 v[{PH+4*t}:{PH+4*t+3}], v{vL16}, s[32:35], s3 offen")
            e("s_waitcnt vmcnt(19)")
            vH = 10
            e(f"v_and_b32 v{vH+1}, 1, v{vG}")
            e(f"v_lshrrev_b32 v{vH+2}, 1, v{vR4}")
            e(f"v_lshl_or_b32 v{vH+2}, v{vH+1}, 1, v{vH+2}")
            e(f"v_lshlrev_b32 v{vH+2}, 1, v{vH+2}")
            e(f"v_xor_b32 v{vH+2}, v{vH+2}, v{vC4}")
            e(f"v_lshlrev_b32 v{vH+2}, 4, v{vH+2}")
            e(f"v_lshl_add_u32 v{vH+1}, v{vG}, 3, v{vR4}")
            e(f"v_lshl_add_u32 v{vH+1}, v2, 5, v{vH+1}")
            e(f"v_lshl_add_u32 v{vH}, v{vH+1}, 7, v{vH+2}")
            e(f"v_add_u32 v{vH}, {K1_HX}, v{vH}")
            e(f"v_xor_b32 v{vH+1}, 64, v{vH}")
            e(f"v_lshlrev_b32 v{vH+2}, 5, v{vG}")
            e(f"v_lshl_add_u32 v{vH+2}, v2, 7, v{vH+2}")
            e(f"v_add_u32 v{vH+2}, {K1_ST}, v{vH+2}")
            HA, HB, HXr, HT_ = 64, 72, 80, 96
            e(f"ds_read_b128 v[{HA}:{HA+3}], v{vH+2} offset:1024")
            e(f"ds_read_b128 v[{HA+4}:{HA+7}], v{vH+2} offset:1040")
            e(f"ds_read_b128 v[{HB}:{HB+3}], v{vH+2} offset:1536")
            e(f"ds_read_b128 v[{HB+4}:{HB+7}], v{vH+2} offset:1552")
            for dt in range(4):
                p, ee = dt >> 1, dt & 1
                for h in range(2):
                    e(f"ds_read_b64_tr_b16 v[{HXr+4*dt+2*h}:{HXr+4*dt+2*h+1}], v{vH+p} offset:{h*512 + ee*8}")
            e("s_waitcnt lgkmcnt(0)")
            e(f"s_lshl_b32 s{sT0}, s{sHG}, 18")
            e(f"s_lshl_b32 s3, s{sTB}, 12")
            e(f"s_add_u32 s{sT0}, s{sT0}, s3")
            e(f"s_lshl_b32 s3, s{sW}, 10")
            e(f"s_add_u32 s{sT0}, s{sT0}, s3")
            if WS_HT: e(f"s_add_u32 s{sT0}, s{sT0}, {WS_HT}")
            for dt in range(4):
                for i2 in range(4):
                    src = HXr + 4*dt + i2
                    e(f"v_lshlrev_b32 v{HT_}, 16, v{src}")
                    e(f"v_and_b32 v{HT_+1}, 0xffff0000, v{src}")
                    e(f"v_fma_f32 v{HT_}, v{HT_}, v{HA+2*i2}, v{HB+2*i2}")
                    e(f"v_fma_f32 v{HT_+1}, v{HT_+1}, v{HA+2*i2+1}, v{HB+2*i2+1}")
                    e(f"v_cvt_pk_bf16_f32 v{src}, v{HT_}, v{HT_+1}")
                e(f"s_add_u32 s3, s{sT0}, {dt*65536}")
                e(f"buffer_store_dwordx4 v[{HXr+4*dt}:{HXr+4*dt+3}], v{vL16}, s[32:35], s3 offen")
            e("s_waitcnt vmcnt(12)")
            e("s_barrier")
            vA, vO = 10, 11
            e(f"v_and_b32 v{vA}, 1, v{vG}")
            e(f"v_lshl_add_u32 v{vO}, v{vA}, 3, v{vR4}")
            e(f"s_movk_i32 s3, {F*2}")
            e(f"v_mul_lo_u32 v{vO}, v{vO}, s3")
            e(f"v_lshrrev_b32 v{vA+2}, 1, v{vG}")
            e(f"v_lshl_add_u32 v{vO}, v{vA+2}, 5, v{vO}")
            e(f"v_lshl_add_u32 v{vO}, v{vC4}, 3, v{vO}")
            e(f"v_lshl_add_u32 v{vO}, v2, 6, v{vO}")
            e(f"v_add_u32 v{vA+3}, {K1_W1}, v{vO}")
            e(f"v_lshlrev_b32 v{vO}, 16, v{vA+2}")
            e(f"v_lshl_add_u32 v{vO}, v{vA}, 8, v{vO}")
            e(f"v_lshl_add_u32 v{vO}, v{vC}, 4, v{vO}")
            e(f"v_lshl_add_u32 v{vO}, v2, 17, v{vO}")
            e(f"s_lshl_b32 s{sT0}, s70, 9")
            srd(e, 36, 12, 86*65536, WS_W1F)
            WR = 100
            for i in range(11):
                e(f"ds_read_b64_tr_b16 v[{WR+4*i}:{WR+4*i+1}], v{vA+3} offset:{i*256}")
                e(f"ds_read_b64_tr_b16 v[{WR+4*i+2}:{WR+4*i+3}], v{vA+3} offset:{i*256 + 4*F*2}")
                if i == 6: e("s_waitcnt lgkmcnt(6)")
            for i in range(11):
                if i >= 4: e(f"s_waitcnt lgkmcnt({2*(10-i)})")
                e(f"s_add_u32 s3, s{sT0}, {i*4*131072}")
                e(f"buffer_store_dwordx4 v[{WR+4*i}:{WR+4*i+3}], v{vO}, s[36:39], s3 offen")
        else:
            KVP_, KVM, ZP_, ZM = 64, 68, 72, 76
            TT = 80
            TP = 10
            VP = 20
            RA = 24
            VT = 40
            for r in range(KVP_, KVP_+16): e(f"v_mov_b32 v{r}, 0")
            for j in range(4):
                e(f"v_xor_b32 v{VT}, {j*128}, v{vRB2}")
                for u in range(2):
                    e(f"ds_read_b128 v[{RA+4*u}:{RA+4*u+3}], v{VT} offset:{u*64}")
                    e(f"ds_read_b128 v[{RA+8+4*u}:{RA+8+4*u+3}], v{VT} offset:{512+u*64}")
                for u in range(2):
                    t = 2*j + u
                    for sg in range(2):
                        d = TT + 8*sg + 4*u
                        e(f"v_mfma_f32_16x16x16_bf16 v[{d}:{d+3}], v[{PH+4*t+2*sg}:{PH+4*t+2*sg+1}], v[{vID}:{vID+1}], 0")
                e("s_waitcnt lgkmcnt(0)")
                for u in range(2):
                    t = 2*j + u
                    for r in range(4):
                        e(f"v_mul_f32 v{VT+r}, v{csB}, v{RA+8+4*u+r}")
                    for r in range(4):
                        e(f"v_fma_f32 v{VT+r}, v{accB+4*t+r}, v{RA+4*u+r}, v{VT+r}")
                    e(f"v_cvt_pk_bf16_f32 v{VP+2*u}, v{VT}, v{VT+1}")
                    e(f"v_cvt_pk_bf16_f32 v{VP+2*u+1}, v{VT+2}, v{VT+3}")
                for sg in range(2):
                    for u in range(2):
                        d = TT + 8*sg + 4*u
                        e(f"v_cvt_pk_bf16_f32 v{TP+4*sg+2*u}, v{d}, v{d+1}")
                        e(f"v_cvt_pk_bf16_f32 v{TP+4*sg+2*u+1}, v{d+2}, v{d+3}")
                for sg in range(2):
                    a_ = f"v[{TP+4*sg}:{TP+4*sg+3}]"
                    e(f"v_mfma_f32_16x16x32_bf16 v[{KVP_+4*sg}:{KVP_+4*sg+3}], {a_}, v[{VP}:{VP+3}], v[{KVP_+4*sg}:{KVP_+4*sg+3}]")
                    e(f"v_mfma_f32_16x16x32_bf16 v[{ZP_+4*sg}:{ZP_+4*sg+3}], {a_}, v[{ONES}:{ONES+3}], v[{ZP_+4*sg}:{ZP_+4*sg+3}]")
            e(f"s_lshl_b32 s{sT0}, s{sHEAD}, 4")
            e(f"s_add_u32 s{sT0}, s{sT0}, s{sTB}")
            e(f"s_lshl_b32 s3, s{sT0}, 11")
            e(f"s_add_u32 s3, s3, {WS_KVP}")
            e(f"buffer_store_dwordx4 v[{KVP_}:{KVP_+3}], v{vL16}, s[32:35], s3 offen")
            e(f"buffer_store_dwordx4 v[{KVM}:{KVM+3}], v{vL16}, s[32:35], s3 offen offset:1024")
            e(f"s_lshl_b32 s3, s{sT0}, 7")
            e(f"s_add_u32 s3, s3, {WS_ZP}")
            e(f"v_lshlrev_b32 v{VT}, 4, v{vG}")
            e("s_mov_b32 exec_lo, 0x00010001")
            e("s_mov_b32 exec_hi, 0x00010001")
            e(f"buffer_store_dwordx4 v[{ZP_}:{ZP_+3}], v{VT}, s[32:35], s3 offen")
            e(f"buffer_store_dwordx4 v[{ZM}:{ZM+3}], v{VT}, s[32:35], s3 offen offset:64")
            e("s_mov_b64 exec, -1")
        stamp_mid(e, 1)
        stamp_end(e, 0, 12)
        e("s_endpgm")

    e(f"s_cmp_eq_u32 s{sROLE}, 0")
    e(f"s_cbranch_scc0 {k}_qrole")
    role_code("kv")
    e.label(f"{k}_qrole")
    role_code("q")
    e.label(f"{k}_done")
    e("s_endpgm")
    return k, 256, 256, K1_LDS, 256

K2_LDS = 4*3*4096
def gen_k2(e):
    k = "k2_kernel"
    e.raw(f".globl {k}\n.p2align 8\n.type {k},@function\n{k}:")
    stamp_start(e)
    e("s_cmp_ge_u32 s2, 240")
    e(f"s_cbranch_scc1 {k}_done")
    e("s_load_dwordx2 s[4:5], s[0:1], 48")
    e("s_load_dwordx2 s[12:13], s[0:1], 88")
    sW, sX, sI, sDQ, sFQ, sROT, sJ, sAO, sBO, sAB, sBB, sT0, sT1 = range(48, 61)
    e("v_and_b32 v1, 63, v0")
    e("v_lshrrev_b32 v2, 6, v0")
    e(f"v_readfirstlane_b32 s{sW}, v2")
    e(f"s_and_b32 s{sX}, s2, 7")
    e(f"s_lshr_b32 s{sI}, s2, 3")
    vG, vC, vL16 = 3, 4, 5
    e(f"v_lshrrev_b32 v{vG}, 4, v1")
    e(f"v_and_b32 v{vC}, 15, v1")
    e(f"v_lshlrev_b32 v{vL16}, 4, v1")
    e(f"s_cmp_ge_u32 s{sI}, 22")
    e(f"s_cbranch_scc1 {k}_orole")
    e(f"s_mul_i32 s3, s{sX}, 22")
    e(f"s_add_u32 s3, s3, s{sI}")
    e(f"s_lshr_b32 s{sFQ}, s3, 3")
    e(f"s_and_b32 s{sDQ}, s3, 7")
    e(f"s_mul_i32 s{sROT}, s{sFQ}, 5")
    e(f"s_lshl_b32 s3, s{sDQ}, 1")
    e(f"s_add_u32 s{sROT}, s{sROT}, s3")
    vAO, vBO = 8, 12
    for j in range(4):
        e(f"v_add_u32 v{vAO+j}, {j*65536}, v{vL16}")
    e(f"v_lshl_add_u32 v6, v2, 16, v{vL16}")
    for j in range(4):
        e(f"v_xor_b32 v{vBO+j}, {j*65536}, v6")
    ACC = 64
    RING = 128
    for r in range(ACC, ACC+64): e(f"v_mov_b32 v{r}, 0")
    e(f"s_lshl_b32 s{sAB}, s{sFQ}, 18")
    e(f"s_lshl_b32 s{sBB}, s{sDQ}, 18")
    e(f"s_lshl_b32 s3, s{sW}, 14")
    e(f"s_add_u32 s{sAB}, s{sAB}, s3")
    e(f"s_add_u32 s{sBB}, s{sBB}, s3")
    e("s_waitcnt lgkmcnt(0)")
    srd(e, 16, 12, 86*65536, WS_W1F)
    srd(e, 20, 12, 32*65536, WS_HT)
    srd(e, 24, 4, F*2)
    srd(e, 28, 12, 32*43*1024, WS_U)
    vB1 = 16
    e(f"v_lshlrev_b32 v7, 3, v{vG}")
    e(f"s_lshl_b32 s3, s{sFQ}, 7")
    for ft in range(4):
        e(f"buffer_load_dwordx2 v[{vB1+2*ft}:{vB1+2*ft+1}], v7, s[24:27], s3 offen offset:{ft*32}")
    def loads(slot, valid=True):
        L = [[f"s_add_u32 s3, s{sJ}, s{sROT}", "s_and_b32 s3, s3, 15", "s_lshl_b32 s3, s3, 10",
              f"s_add_u32 s{sAO}, s{sAB}, s3", f"s_add_u32 s{sBO}, s{sBB}, s3", f"s_add_u32 s{sJ}, s{sJ}, 1"]]
        for j in range(4):
            b = RING + 32*slot + 4*j
            L.append([f"buffer_load_dwordx4 v[{b}:{b+3}], v{vAO+j}, s[16:19], s{sAO} offen"])
            b += 16
            L.append([f"buffer_load_dwordx4 v[{b}:{b+3}], v{vBO+j}, s[20:23], s{sBO} offen"])
        L[1] = L[0] + L[1]
        return L[1:]
    e(f"s_mov_b32 s{sJ}, 0")
    for sl in range(3):
        for g in loads(sl):
            for t in g: e(t)
    def step(slot, vm, nxt):
        e(f"s_waitcnt vmcnt({vm})")
        G = loads((slot + 3) % 4) if nxt else []
        n = 0
        for q in range(4):
            for ft in range(4):
                a_ = RING + 32*slot + 4*ft; b_ = RING + 32*slot + 16 + 4*q; c_ = ACC + 16*q + 4*ft
                e(f"v_mfma_f32_16x16x32_bf16 v[{c_}:{c_+3}], v[{a_}:{a_+3}], v[{b_}:{b_+3}], v[{c_}:{c_+3}]")
                if n % 2 == 0 and G:
                    for t in G.pop(0): e(t)
                n += 1
    sIT = 62
    e(f"s_mov_b32 s{sIT}, 0")
    e.label(f"{k}_loop")
    for sl in range(4): step(sl, 16, True)
    e(f"s_add_u32 s{sIT}, s{sIT}, 1")
    e(f"s_cmp_lt_u32 s{sIT}, 3")
    e(f"s_cbranch_scc1 {k}_loop")
    step(0, 16, True)
    step(1, 16, False)
    step(2, 8, False)
    step(3, 0, False)
    stamp_mid(e, 0)
    vW = 24
    e(f"v_mul_u32_u24 v{vW+4}, {3*4096}, v2")
    e(f"v_add_u32 v{vW+4}, v{vW+4}, v{vL16}")
    for q in range(1, 4):
        e(f"v_xor_b32 v{vW+q}, {q}, v2")
        e(f"v_mul_u32_u24 v{vW+q}, {3*4096}, v{vW+q}")
        e(f"v_add_u32 v{vW+q}, v{vW+q}, v{vL16}")
    for q in range(1, 4):
        for ft in range(4):
            c_ = ACC + 16*q + 4*ft
            e(f"ds_write_b128 v{vW+q}, v[{c_}:{c_+3}] offset:{(q-1)*4096 + ft*1024}")
    e("s_waitcnt lgkmcnt(0)")
    e("s_barrier")
    for q in range(3):
        for ft in range(4):
            b = RING + 16*q + 4*ft
            e(f"ds_read_b128 v[{b}:{b+3}], v{vW+4} offset:{q*4096 + ft*1024}")
    vBF = 32
    for ft in range(4):
        for h in range(2):
            e(f"v_lshlrev_b32 v{vBF+4*ft+2*h}, 16, v{vB1+2*ft+h}")
            e(f"v_and_b32 v{vBF+4*ft+2*h+1}, 0xffff0000, v{vB1+2*ft+h}")
    for i in range(16): e(f"v_add_f32 v{ACC+i}, v{ACC+i}, v{vBF+i}")
    for q in range(3):
        e(f"s_waitcnt lgkmcnt({4*(2-q)})")
        for i in range(16): e(f"v_add_f32 v{ACC+i}, v{ACC+i}, v{RING+16*q+i}")
    c = 0.7978845608028654
    k1 = -2*c*LOG2E; k2 = k1*0.044715
    e(f"s_mov_b32 s{sT0}, {f32(k2)}")
    e(f"v_mov_b32 v{vW}, {f32(k1)}")
    T = RING
    for i in range(16): e(f"v_mul_f32 v{T+i}, v{ACC+i}, v{ACC+i}")
    for i in range(16): e(f"v_fma_f32 v{T+i}, v{T+i}, s{sT0}, v{vW}")
    for i in range(16): e(f"v_mul_f32 v{T+i}, v{T+i}, v{ACC+i}")
    for i in range(16): e(f"v_exp_f32 v{T+i}, v{T+i}")
    for i in range(16): e(f"v_add_f32 v{T+i}, 1.0, v{T+i}")
    for i in range(16): e(f"v_rcp_f32 v{T+i}, v{T+i}")
    for i in range(16): e(f"v_mul_f32 v{T+i}, v{T+i}, v{ACC+i}")
    for i in range(8): e(f"v_cvt_pk_bf16_f32 v{ACC+i}, v{T+2*i}, v{T+2*i+1}")
    e(f"s_lshl_b32 s3, s{sDQ}, 2")
    e(f"s_add_u32 s3, s3, s{sW}")
    e(f"s_mul_i32 s3, s3, 43")
    e(f"s_lshl_b32 s{sT0}, s{sFQ}, 1")
    e(f"s_add_u32 s3, s3, s{sT0}")
    e(f"s_lshl_b32 s3, s3, 10")
    e(f"buffer_store_dwordx4 v[{ACC}:{ACC+3}], v{vL16}, s[28:31], s3 offen")
    e(f"s_cmp_eq_u32 s{sFQ}, 21")
    e(f"s_cselect_b32 s3, {OOB}, s3")
    e(f"buffer_store_dwordx4 v[{ACC+4}:{ACC+7}], v{vL16}, s[28:31], s3 offen offset:1024")
    stamp_mid(e, 1)
    stamp_end(e, 1, 12)
    e("s_endpgm")
    e.label(f"{k}_orole")
    sTQ, sHEAD = sDQ, sFQ
    e(f"s_sub_u32 s{sI}, s{sI}, 22")
    e(f"s_lshr_b32 s{sTQ}, s{sX}, 1")
    e(f"s_lshl_b32 s{sTQ}, s{sTQ}, 1")
    e(f"s_lshr_b32 s3, s{sI}, 2")
    e(f"s_add_u32 s{sTQ}, s{sTQ}, s3")
    e(f"s_and_b32 s{sHEAD}, s{sX}, 1")
    e(f"s_lshl_b32 s{sHEAD}, s{sHEAD}, 2")
    e(f"s_and_b32 s3, s{sI}, 3")
    e(f"s_add_u32 s{sHEAD}, s{sHEAD}, s3")
    e(f"s_lshl_b32 s{sHEAD}, s{sHEAD}, 2")
    e(f"s_add_u32 s{sHEAD}, s{sHEAD}, s{sW}")
    e(f"v_lshlrev_b32 v6, 4, v{vG}")
    e("s_waitcnt lgkmcnt(0)")
    srd(e, 16, 12, WS_USED)
    KP = 16
    ZZ = 144
    PQ = 160
    e(f"s_lshl_b32 s{sT0}, s{sHEAD}, 15")
    e(f"s_add_u32 s{sT0}, s{sT0}, {WS_KVP}")
    for tb in range(16):
        if tb % 2 == 0 and tb: e(f"s_add_u32 s{sT0}, s{sT0}, 4096")
        for sg in range(2):
            b = KP + 8*tb + 4*sg
            e(f"buffer_load_dwordx4 v[{b}:{b+3}], v{vL16}, s[16:19], s{sT0} offen offset:{(tb % 2)*2048 + sg*1024}")
    e(f"v_lshl_add_u32 v6, v{vC}, 7, v6")
    e(f"s_lshl_b32 s3, s{sHEAD}, 11")
    e(f"s_add_u32 s3, s3, {WS_ZP}")
    e(f"buffer_load_dwordx4 v[{ZZ}:{ZZ+3}], v6, s[16:19], s3 offen")
    e(f"buffer_load_dwordx4 v[{ZZ+4}:{ZZ+7}], v6, s[16:19], s3 offen offset:64")
    e(f"s_lshl_b32 s{sT0}, s{sTQ}, 19")
    e(f"s_lshl_b32 s3, s{sHEAD}, 10")
    e(f"s_add_u32 s{sT0}, s{sT0}, s3")
    e(f"s_add_u32 s{sT0}, s{sT0}, {WS_PHQ}")
    for t in range(16):
        e(f"s_add_u32 s3, s{sT0}, {t*32768}")
        e(f"buffer_load_dwordx4 v[{PQ+4*t}:{PQ+4*t+3}], v{vL16}, s[16:19], s3 offen")
    for tb in range(1, 16):
        e(f"s_waitcnt vmcnt({18 + 2*(15-tb)})")
        for i in range(8): e(f"v_add_f32 v{KP+i}, v{KP+i}, v{KP+8*tb+i}")
    e("s_waitcnt vmcnt(16)")
    for sh in (8, 4, 2, 1):
        for i in range(8):
            e(f"v_add_f32_dpp v{ZZ+i}, v{ZZ+i}, v{ZZ+i} row_ror:{sh} row_mask:0xf bank_mask:0xf")
    KA, ZA = 8, 12
    for i in range(4):
        e(f"v_cvt_pk_bf16_f32 v{KA+i}, v{KP+2*i}, v{KP+2*i+1}")
        e(f"v_cvt_pk_bf16_f32 v{ZA+i}, v{ZZ+2*i}, v{ZZ+2*i+1}")
    stamp_mid(e, 0)
    e(f"s_lshl_b32 s{sT0}, s{sTQ}, 18")
    e(f"s_lshr_b32 s3, s{sHEAD}, 1")
    e(f"s_lshl_b32 s3, s3, 10")
    e(f"s_add_u32 s{sT0}, s{sT0}, s3")
    e(f"s_and_b32 s3, s{sHEAD}, 1")
    e(f"s_lshl_b32 s3, s3, 3")
    e(f"s_add_u32 s{sT0}, s{sT0}, s3")
    e(f"s_add_u32 s{sT0}, s{sT0}, {WS_O}")
    NUM = 16
    for t in range(16):
        e(f"s_waitcnt vmcnt({15-t})")
        b = f"v[{PQ+4*t}:{PQ+4*t+3}]"
        e(f"v_mfma_f32_16x16x32_bf16 v[{NUM+8*t}:{NUM+8*t+3}], v[{KA}:{KA+3}], {b}, 0")
        e(f"v_mfma_f32_16x16x32_bf16 v[{NUM+8*t+4}:{NUM+8*t+7}], v[{ZA}:{ZA+3}], {b}, 0")
    for t in range(16):
        n = NUM + 8*t
        e(f"v_add_f32 v{n+4}, {f32(1e-6)}, v{n+4}")
        e(f"v_rcp_f32 v{n+4}, v{n+4}")
        e(f"s_add_u32 s3, s{sT0}, {t*16384}")
        for r in range(4): e(f"v_mul_f32 v{n+r}, v{n+r}, v{n+4}")
        e(f"v_cvt_pk_bf16_f32 v{n+6}, v{n}, v{n+1}")
        e(f"v_cvt_pk_bf16_f32 v{n+7}, v{n+2}, v{n+3}")
        e(f"buffer_store_dwordx2 v[{n+6}:{n+7}], v{vL16}, s[16:19], s3 offen")
    stamp_mid(e, 1)
    stamp_end(e, 1, 12)
    e.label(f"{k}_done")
    e("s_endpgm")
    return k, 240, 256, K2_LDS, 256

K3_RED = 65536
K3_LDS = 131072
def gen_k3(e):
    k = "k3_kernel"
    e.raw(f".globl {k}\n.p2align 8\n.type {k},@function\n{k}:")
    stamp_start(e)
    e("s_cmp_ge_u32 s2, 256")
    e(f"s_cbranch_scc1 {k}_done")
    e("s_load_dwordx2 s[4:5], s[0:1], 0")
    e("s_load_dwordx2 s[6:7], s[0:1], 24")
    e("s_load_dwordx4 s[8:11], s[0:1], 56")
    e("s_load_dwordx2 s[14:15], s[0:1], 72")
    e("s_load_dwordx2 s[12:13], s[0:1], 88")
    sW, sSQ, sDQ, sROT, sJ, sFO, sTO, sFB, sTB, sT0, sT1, sM0, sIT = range(48, 61)
    e("v_and_b32 v1, 63, v0")
    e("v_lshrrev_b32 v2, 6, v0")
    e(f"v_readfirstlane_b32 s{sW}, v2")
    e(f"s_and_b32 s{sSQ}, s2, 7")
    e(f"s_lshl_b32 s{sSQ}, s{sSQ}, 2")
    e(f"s_lshr_b32 s3, s2, 6")
    e(f"s_add_u32 s{sSQ}, s{sSQ}, s3")
    e(f"s_lshl_b32 s{sROT}, s3, 2")
    e(f"s_bfe_u32 s{sDQ}, s2, {3 | (3 << 16)}")
    e(f"s_lshl_b32 s3, s{sDQ}, 1")
    e(f"s_add_u32 s{sROT}, s{sROT}, s3")
    vG, vC, vL16, vR4, vC4 = 3, 4, 5, 6, 7
    e(f"v_lshrrev_b32 v{vG}, 4, v1")
    e(f"v_and_b32 v{vC}, 15, v1")
    e(f"v_lshlrev_b32 v{vL16}, 4, v1")
    e(f"v_bfe_u32 v{vR4}, v1, 2, 2")
    e(f"v_and_b32 v{vC4}, 3, v1")
    vFO, vTD, vTR = 8, 12, 16
    vT = 20
    vX, vB2 = 24, 32
    vXO = 33
    YR, SR = 64, 128
    RING = 144
    TRB = 208
    e(f"s_lshl_b32 s{sM0}, s{sW}, 14")
    e(f"v_lshlrev_b32 v{vT}, 1, v{vG}")
    e(f"v_and_b32 v{vT+1}, 7, v1")
    e(f"v_xor_b32 v{vT}, v{vT}, v{vT+1}")
    e(f"v_lshlrev_b32 v{vT}, 4, v{vT}")
    e(f"v_lshrrev_b32 v{vT+1}, 3, v1")
    e(f"v_lshl_add_u32 v{vT+2}, v{vG}, 2, v{vR4}")
    e(f"v_bfe_u32 v{vT+3}, v{vT+2}, 1, 2")
    e(f"v_lshlrev_b32 v{vT+2}, 7, v{vT+2}")
    e(f"v_lshl_add_u32 v{vT+2}, v2, 14, v{vT+2}")
    e(f"v_lshl_add_u32 v{vXO}, v2, 4, v{vC}")
    e(f"v_lshlrev_b32 v{vB2}, 1, v{vXO}")
    e(f"v_lshlrev_b32 v{vXO}, 10, v{vXO}")
    e(f"v_lshl_add_u32 v{vXO}, v{vG}, 4, v{vXO}")
    sXO = 62
    e(f"s_lshl_b32 s{sXO}, s{sSQ}, 16")
    e(f"s_lshl_b32 s3, s{sDQ}, 7")
    e(f"s_add_u32 s{sXO}, s{sXO}, s3")
    e("s_waitcnt lgkmcnt(0)")
    srd(e, 24, 4, S*D*2)
    srd(e, 28, 14, S*D*2)
    srd(e, 32, 10, S*2)
    e(f"s_cmp_eq_u32 s{sW}, 3")
    e(f"s_cbranch_scc1 {k}_g4")

    def body(g4):
        lab = f"{k}_g4l" if g4 else f"{k}_g3l"
        pitch = 1024 if g4 else 4096
        def acc(q, j):
            if g4 and q == 0: return SR + 4*j
            return YR + 16*q + 4*j
        if g4:
            srd(e, 16, 12, 128*16*1024, WS_O)
            srd(e, 20, 6, D*D*2)
            for q in range(4):
                e(f"v_add_u32 v{vFO+q}, {(q ^ 3)*16384}, v{vL16}")
            e(f"s_lshl_b32 s{sFB}, s{sSQ}, 16")
            e(f"s_lshl_b32 s{sTB}, s{sDQ}, 7")
            e(f"v_lshlrev_b32 v{vT+3}, 1, v{vT+3}")
            e(f"v_xor_b32 v{vT+3}, v{vT+3}, v{vC4}")
            e(f"v_lshl_add_u32 v{vTR}, v{vT+3}, 4, v{vT+2}")
            e(f"v_xor_b32 v{vTR+1}, 64, v{vTR}")
        else:
            srd(e, 16, 12, 32*43*1024, WS_U)
            srd(e, 20, 8, F*S*2)
            for j in range(4):
                e(f"v_add_u32 v{vFO+j}, {j*43*1024}, v{vL16}")
            e(f"s_mul_i32 s{sFB}, s{sDQ}, {4*43*1024}")
            e(f"s_lshl_b32 s{sTB}, s{sSQ}, 7")
            e(f"v_xor_b32 v{vT+3}, v{vT+3}, v2")
            e(f"v_lshl_add_u32 v{vT+2}, v{vC4}, 3, v{vT+2}")
            e(f"v_lshl_add_u32 v{vTR}, v{vT+3}, 5, v{vT+2}")
            for q in range(1, 4):
                e(f"v_xor_b32 v{vTR+q}, {q*32}, v{vTR}")
        e(f"s_mov_b32 s3, {pitch}")
        e(f"v_mad_u32_u24 v{vTD}, v{vT+1}, s3, v{vT}")
        for n in range(1, 4):
            e(f"v_add_u32 v{vTD+n}, {n*(8*pitch - 1024)}, v{vTD}")
        for q in range(4):
            for j in range(4):
                for r in range(4): e(f"v_mov_b32 v{acc(q, j)+r}, 0")
        def loads(slot):
            pre = [f"s_add_u32 s3, s{sJ}, s{sROT}", "s_and_b32 s3, s3, 15", f"s_add_u32 s{sJ}, s{sJ}, 1"]
            if g4:
                pre += [f"s_lshl_b32 s{sFO}, s3, 10", f"s_add_u32 s{sFO}, s{sFO}, s{sFB}",
                        f"s_lshl_b32 s{sTO}, s3, 15", f"s_add_u32 s{sTO}, s{sTO}, s{sTB}"]
            else:
                pre += ["s_mul_i32 s3, s3, 3", f"s_add_u32 s3, s3, s{sW}",
                        f"s_lshl_b32 s{sFO}, s3, 10", f"s_add_u32 s{sFO}, s{sFO}, s{sFB}",
                        f"s_lshl_b32 s{sTO}, s3, 17", f"s_add_u32 s{sTO}, s{sTO}, s{sTB}",
                        "s_cmp_lt_u32 s3, 43", f"s_cselect_b32 s{sFO}, s{sFO}, {OOB}"]
            pre += [f"s_add_u32 m0, s{sM0}, {slot*4096}"]
            L = []
            for n in range(4):
                L.append([f"buffer_load_dwordx4 v{vTD+n}, s[20:23], s{sTO} offen offset:{n*1024} lds"])
            for j in range(4):
                b = RING + 16*slot + 4*j
                L.append([f"buffer_load_dwordx4 v[{b}:{b+3}], v{vFO+j}, s[16:19], s{sFO} offen"])
            L[0] = pre + L[0]
            return L
        def trreads(slot, buf):
            L = []
            for i in range(4):
                for h in range(2):
                    b = TRB + 16*buf + 4*i + 2*h
                    if g4: L.append(f"ds_read_b64_tr_b16 v[{b}:{b+1}], v{vTR + (i >> 1)} offset:{slot*4096 + h*2048 + (i & 1)*8}")
                    else:  L.append(f"ds_read_b64_tr_b16 v[{b}:{b+1}], v{vTR + i} offset:{slot*4096 + h*2048}")
            return L
        e(f"s_mov_b32 s{sJ}, 0")
        for sl in range(3):
            for g in loads(sl):
                for t in g: e(t)
        def step(slot, vm, nxt):
            e(f"s_waitcnt vmcnt({vm})")
            for t in trreads(slot, 0): e(t)
            G = loads((slot + 3) % 4) if nxt else []
            for _ in range(2):
                if G:
                    for t in G.pop(0): e(t)
            n = 0
            for i in range(4):
                e(f"s_waitcnt lgkmcnt({2*(3-i)})")
                for j in range(4):
                    tr = f"v[{TRB+4*i}:{TRB+4*i+3}]"; fr = f"v[{RING+16*slot+4*j}:{RING+16*slot+4*j+3}]"
                    if g4:
                        c_ = acc(j, i); e(f"v_mfma_f32_16x16x32_bf16 v[{c_}:{c_+3}], {tr}, {fr}, v[{c_}:{c_+3}]")
                    else:
                        c_ = acc(i, j); e(f"v_mfma_f32_16x16x32_bf16 v[{c_}:{c_+3}], {fr}, {tr}, v[{c_}:{c_+3}]")
                    if n % 2 == 1 and G:
                        for t in G.pop(0): e(t)
                    n += 1
        e(f"s_mov_b32 s{sIT}, 0")
        e.label(lab)
        for sl in range(4): step(sl, 16, True)
        e(f"s_add_u32 s{sIT}, s{sIT}, 1")
        e(f"s_cmp_lt_u32 s{sIT}, 3")
        e(f"s_cbranch_scc1 {lab}")
        step(0, 16, True)
        e(f"buffer_load_dwordx4 v[{vX}:{vX+3}], v{vXO}, s[24:27], s{sXO} offen")
        e(f"buffer_load_dwordx4 v[{vX+4}:{vX+7}], v{vXO}, s[24:27], s{sXO} offen offset:64")
        e(f"s_lshl_b32 s3, s{sSQ}, 7")
        e(f"buffer_load_ushort v{vB2}, v{vB2}, s[32:35], s3 offen")
        step(1, 19, False)
        step(2, 11, False)
        step(3, 3, False)
        stamp_mid(e, 0)
        e(f"v_lshl_add_u32 v{vT}, v2, 12, v{vL16}")
        e(f"v_lshl_add_u32 v{vT}, v2, 14, v{vT}")
        e(f"v_add_u32 v{vT}, {K3_RED}, v{vT}")
        for q in range(1, 4):
            e(f"v_xor_b32 v{vT+q}, {q*16384}, v{vT}")
        for q in range(1, 4):
            for j in range(4):
                c_ = acc(q, j)
                e(f"ds_write_b128 v{vT+q}, v[{c_}:{c_+3}] offset:{j*1024}")
        e(f"v_lshl_add_u32 v{vT}, v2, 14, v{vL16}")
        e(f"v_add_u32 v{vT}, {K3_RED}, v{vT}")
        if not g4:
            e(f"s_add_u32 s3, s{sW}, 1\ns_cmp_eq_u32 s3, 3\ns_cselect_b32 s3, 0, s3\ns_lshl_b32 s{sT0}, s3, 12")
            e(f"s_add_u32 s3, s3, 1\ns_cmp_eq_u32 s3, 3\ns_cselect_b32 s3, 0, s3\ns_lshl_b32 s{sT1}, s3, 12")
            e(f"v_add_u32 v{vFO}, s{sT0}, v{vT}")
            e(f"v_add_u32 v{vFO+1}, s{sT1}, v{vT}")
        e("s_waitcnt lgkmcnt(0)")
        e("s_barrier")
        if g4:
            for j in range(4): e(f"ds_read_b128 v[{YR+4*j}:{YR+4*j+3}], v{vT} offset:{j*1024}")
            for q in range(2):
                for j in range(4): e(f"ds_read_b128 v[{RING+16*q+4*j}:{RING+16*q+4*j+3}], v{vT} offset:{(q+1)*4096 + j*1024}")
        else:
            for j in range(4): e(f"ds_read_b128 v[{SR+4*j}:{SR+4*j+3}], v{vT} offset:{3*4096 + j*1024}")
            for q in range(2):
                for j in range(4): e(f"ds_read_b128 v[{RING+16*q+4*j}:{RING+16*q+4*j+3}], v{vFO+q} offset:{j*1024}")
    body(False)
    e(f"s_branch {k}_epi")
    e.label(f"{k}_g4")
    body(True)
    e.label(f"{k}_epi")
    e("s_waitcnt vmcnt(0)")
    e(f"v_lshlrev_b32 v{vB2}, 16, v{vB2}")
    e("s_waitcnt lgkmcnt(4)")
    for i in range(16): e(f"v_add_f32 v{YR+i}, v{YR+i}, v{RING+i}")
    e("s_waitcnt lgkmcnt(0)")
    for i in range(16): e(f"v_add_f32 v{RING+16+i}, v{RING+16+i}, v{vB2}")
    for i in range(16): e(f"v_add_f32 v{YR+i}, v{YR+i}, v{RING+16+i}")
    T = RING
    e(f"s_mov_b32 s3, {f32(-LOG2E)}")
    for i in range(16): e(f"v_mul_f32 v{T+i}, s3, v{YR+i}")
    for i in range(16): e(f"v_exp_f32 v{T+i}, v{T+i}")
    for i in range(16): e(f"v_add_f32 v{T+i}, 1.0, v{T+i}")
    for i in range(16): e(f"v_rcp_f32 v{T+i}, v{T+i}")
    for i in range(16): e(f"v_mul_f32 v{YR+i}, v{YR+i}, v{SR+i}")
    for i in range(8):
        e(f"v_lshlrev_b32 v{T+16+2*i}, 16, v{vX+i}")
        e(f"v_and_b32 v{T+16+2*i+1}, 0xffff0000, v{vX+i}")
    for i in range(16): e(f"v_fma_f32 v{YR+i}, v{YR+i}, v{T+i}, v{T+16+i}")
    for i in range(8): e(f"v_cvt_pk_bf16_f32 v{vX+i}, v{YR+2*i}, v{YR+2*i+1}")
    e(f"buffer_store_dwordx4 v[{vX}:{vX+3}], v{vXO}, s[28:31], s{sXO} offen")
    e(f"buffer_store_dwordx4 v[{vX+4}:{vX+7}], v{vXO}, s[28:31], s{sXO} offen offset:64")
    stamp_mid(e, 1)
    stamp_end(e, 2, 12)
    e.label(f"{k}_done")
    e("s_endpgm")
    return k, 256, 256, K3_LDS, 256

def kd(name, vgpr):
    return f""".p2align 6
.amdhsa_kernel {name}
  .amdhsa_next_free_vgpr {vgpr}
  .amdhsa_next_free_sgpr 102
  .amdhsa_accum_offset {min(256, (vgpr+3)//4*4)}
  .amdhsa_group_segment_fixed_size 0
  .amdhsa_kernarg_size 96
  .amdhsa_user_sgpr_count 2
  .amdhsa_user_sgpr_kernarg_segment_ptr 1
  .amdhsa_system_sgpr_workgroup_id_x 1
.end_amdhsa_kernel"""

def build(path, stamps=False):
    global STAMPS
    STAMPS = stamps
    e = Emitter()
    ks = [g(e) for g in (gen_k1, gen_k2, gen_k3)]
    hdr = open(f"cdna_kernels/{NAME}.s.ref").read().split("; Override")[0]
    s = hdr + "".join(f"; @launch kernel={k} grid=({g},1,1) block=({b},1,1) lds={l}\n" for k, g, b, l, v in ks)
    s += '.amdgcn_target "amdgcn-amd-amdhsa--gfx950"\n.text\n' + e.text() + '\n.section .rodata,"a"\n' + "\n".join(kd(k, v) for k, g, b, l, v in ks) + "\n"
    open(path, "w").write(s)

if __name__ == "__main__":
    build(sys.argv[1], stamps=(sys.argv[2] if len(sys.argv) > 2 else False))
```

```python
import sys, struct
sys.path.insert(0, "gen")
from emit import *

NAME = "recurrent_scan__linear_kernel_hedgehog__mixer_token_mlp__prompt"
S, D, H, F = 2048, 512, 32, 1376
WS_HT, WS_PHQ, WS_KVP, WS_ZP, WS_U, WS_O, WS_W1F = 0x000000, 0x200000, 0x600000, 0x700000, 0x800000, 0xA00000, 0xC00000
WS_USED = 0x1200000
WS_STAMP = 0x1800000
LOG2E = 1.4426950408889634
def f32(x): return "0x%08x" % struct.unpack("<I", struct.pack("<f", x))[0]
OOB = 0x7f000000

class Cnt:
    def __init__(self, e, name, mx): self.e = e; self.name = name; self.q = []; self.mx = mx
    def issue(self, tag): self.q.append(tag)
    def wait(self, tag):
        if tag not in self.q: return
        i = len(self.q) - 1 - self.q[::-1].index(tag)
        n = len(self.q) - 1 - i
        self.e(f"s_waitcnt {self.name}({min(n, self.mx)})")
        self.q = self.q[i+1:] if n <= self.mx else self.q[len(self.q) - self.mx:]
    def wait_all(self):
        self.e(f"s_waitcnt {self.name}(0)"); self.q = []
    def reset(self): self.q = []

def srd(e, d, base, nbytes, off=0):
    if off:
        e(f"s_add_u32 s{d}, s{base}, {off}")
        e(f"s_addc_u32 s{d+1}, s{base+1}, 0")
    else:
        e(f"s_mov_b32 s{d}, s{base}")
        e(f"s_mov_b32 s{d+1}, s{base+1}")
    e(f"s_mov_b32 s{d+2}, {nbytes}")
    e(f"s_mov_b32 s{d+3}, 0x20000")

def interleave(*lists):
    out = []
    n = max(len(l) for l in lists)
    for i in range(n):
        for l in lists:
            if i < len(l): out.append(l[i])
    return out

STAMPS = False
def stamp_start(e):
    if STAMPS:
        e("s_memrealtime s[96:97]")
def stamp_mid(e, k):
    if STAMPS:
        e(f"s_memrealtime s[{92+2*k}:{93+2*k}]")
def stamp_end(e, kidx, wsptr):
    if STAMPS == "dbg":
        global _DBGN
        _DBGN = globals().get("_DBGN", 0) + 1
        e("s_waitcnt vmcnt(0)")
        e("s_memrealtime s[98:99]")
        e("s_load_dwordx2 s[86:87], s[0:1], 80")
        e("s_waitcnt lgkmcnt(0)")
        e("s_lshl_b32 s3, s2, 2\ns_add_u32 s3, s3, s48\ns_cmp_eq_u32 s3, 68")
        e(f"s_cbranch_scc0 dbgskip{_DBGN}")
        for tgt in range(3):
            d = (tgt - kidx)*512
            if d >= 0: e(f"s_add_u32 s88, s86, {d}\ns_addc_u32 s89, s87, 0")
            else: e(f"s_sub_u32 s88, s86, {-d}\ns_subb_u32 s89, s87, 0")
            e("s_mov_b32 s90, 256\ns_mov_b32 s91, 0x20000")
            e("v_mov_b32 v4, s96\nv_mov_b32 v5, s92\nv_mov_b32 v6, s94\nv_mov_b32 v7, s98")
            e("v_mov_b32 v8, 0")
            e("s_mov_b64 exec, 1")
            e(f"buffer_store_dwordx4 v[4:7], v8, s[88:91], 0 offen offset:{kidx*16}")
            e("s_waitcnt vmcnt(0)")
        e.label(f"dbgskip{_DBGN}")
        return
    if STAMPS:
        e("s_waitcnt vmcnt(0)")
        e("s_memrealtime s[98:99]")
        e("s_waitcnt lgkmcnt(0)")
        srd(e, 88, wsptr, 0x100000, WS_STAMP + kidx*0x10000)
        e("v_mov_b32 v4, s96\nv_mov_b32 v5, s92\nv_mov_b32 v6, s94\nv_mov_b32 v7, s98")
        e("s_lshl_b32 s3, s2, 6")
        e("s_lshl_b32 s87, s48, 4\nv_mov_b32 v8, s87")
        e("s_mov_b64 exec, 1")
        e("buffer_store_dwordx4 v[4:7], v8, s[88:91], s3 offen")

def softmax_pair(P0, P1, O0, O1, T, sL, sNL):
    L = []
    a = L.append
    m0, n0, m1, n1, f, g, h = T, T+1, T+2, T+3, T+4, T+5, T+6
    E = T + 8
    for (P, m, n) in ((P0, m0, n0), (P1, m1, n1)):
        a(f"v_max3_f32 v{m}, v{P}, v{P+1}, v{P+2}")
        a(f"v_max3_f32 v{n}, -v{P}, -v{P+1}, -v{P+2}")
        a(f"v_max_f32 v{m}, v{m}, v{P+3}")
        a(f"v_max_f32_e64 v{n}, v{n}, -v{P+3}")
    def network(op, mid):
        a(f"v_permlane32_swap_b32 v{m0}, v{n0}")
        a(f"v_permlane32_swap_b32 v{m1}, v{n1}")
        a(f"{op} v{m0}, v{m0}, v{n0}")
        a(f"{op} v{m1}, v{m1}, v{n1}")
        a(f"v_permlane16_swap_b32 v{m0}, v{m1}")
        a(f"{op} v{m0}, v{m0}, v{m1}")
        a(mid.format(r=f"v{m0}"))
        a(f"v_mov_b32 v{m1}, v{m0}")
        a(f"v_permlane16_swap_b32 v{m0}, v{m1}")
        a(f"v_mov_b32 v{n0}, v{m0}")
        a(f"v_mov_b32 v{n1}, v{m1}")
        a(f"v_permlane32_swap_b32 v{m0}, v{n0}")
        a(f"v_permlane32_swap_b32 v{m1}, v{n1}")
    network("v_max_f32", "v_mul_f32 {r}, " + f"s{sNL}" + ", {r}")
    for ti, (P, m, n) in enumerate(((P0, m0, n0), (P1, m1, n1))):
        for r in range(4):
            a(f"v_fma_f32 v{E+8*ti+r}, v{P+r}, s{sL}, v{m}")
            a(f"v_fma_f32 v{E+8*ti+4+r}, -v{P+r}, s{sL}, v{n}")
    for i in range(16):
        a(f"v_exp_f32 v{E+i}, v{E+i}")
    for ti, (m, n) in enumerate(((m0, n0), (m1, n1))):
        for sg, d in enumerate((m, n)):
            b = E + 8*ti + 4*sg
            a(f"v_add_f32 v{d}, v{b}, v{b+1}")
            a(f"v_add_f32 v{f+sg}, v{b+2}, v{b+3}")
            a(f"v_add_f32 v{d}, v{d}, v{f+sg}")
    network("v_add_f32", "v_rcp_f32 {r}, {r}")
    for ti, (O, m, n) in enumerate(((O0, m0, n0), (O1, m1, n1))):
        for sg, d in enumerate((m, n)):
            b = E + 8*ti + 4*sg
            for r in range(4):
                a(f"v_mul_f32 v{b+r}, v{b+r}, v{d}")
            a(f"v_cvt_pk_bf16_f32 v{O+2*sg}, v{b}, v{b+1}")
            a(f"v_cvt_pk_bf16_f32 v{O+2*sg+1}, v{b+2}, v{b+3}")
    return L

K1_XS = 16384
K1_WB = 3*16384
K1_WS = 16384
K1_ST = K1_WB + 3*K1_WS
K1_HX = K1_ST + 2048
K1_W1 = K1_HX + 16384
K1_LDS = K1_W1 + 44032

def gen_k1(e):
    k = "k1_kernel"
    e.raw(f".globl {k}\n.p2align 8\n.type {k},@function\n{k}:")
    stamp_start(e)
    e("s_cmp_ge_u32 s2, 256")
    e(f"s_cbranch_scc1 {k}_done")
    e("s_load_dwordx4 s[4:7], s[0:1], 0")
    e("s_load_dwordx2 s[8:9], s[0:1], 16")
    e("s_load_dwordx2 s[10:11], s[0:1], 40")
    e("s_load_dwordx2 s[12:13], s[0:1], 88")
    sW, sTB, sHG, sROLE, sROT, sST, sXO, sWO, sM0X, sM0W, sDEL, sL, sNL, sT0, sT1, sHEAD, sSLOT = range(48, 65)
    e("v_and_b32 v1, 63, v0")
    e("v_lshrrev_b32 v2, 6, v0")
    e(f"v_readfirstlane_b32 s{sW}, v2")
    e(f"s_and_b32 s{sT0}, s2, 7")
    e(f"s_lshr_b32 s{sT1}, s2, 3")
    e(f"s_and_b32 s{sROLE}, s{sT1}, 1")
    e(f"s_lshr_b32 s{sT1}, s{sT1}, 1")
    e(f"s_lshr_b32 s{sTB}, s{sT0}, 1")
    e(f"s_lshl_b32 s{sTB}, s{sTB}, 2")
    e(f"s_lshr_b32 s3, s{sT1}, 2")
    e(f"s_add_u32 s{sTB}, s{sTB}, s3")
    e(f"s_and_b32 s{sHG}, s{sT0}, 1")
    e(f"s_lshl_b32 s{sHG}, s{sHG}, 2")
    e(f"s_and_b32 s3, s{sT1}, 3")
    e(f"s_add_u32 s{sHG}, s{sHG}, s3")
    e(f"s_add_u32 s{sROT}, s{sHG}, s{sTB}")
    e(f"s_and_b32 s{sROT}, s{sROT}, 3")
    e(f"s_lshl_b32 s{sROT}, s{sROT}, 1")
    e(f"s_add_u32 s{sROT}, s{sROT}, s{sROLE}")
    e(f"s_lshl_b32 s{sHEAD}, s{sHG}, 2")
    e(f"s_add_u32 s{sHEAD}, s{sHEAD}, s{sW}")
    e(f"s_mov_b32 s{sL}, {f32(LOG2E)}")
    e(f"s_mov_b32 s{sNL}, {f32(-LOG2E)}")
    vG, vC, vR4, vC4, vL3, vL7 = 3, 4, 5, 6, 7, 8
    e(f"v_lshrrev_b32 v{vG}, 4, v1")
    e(f"v_and_b32 v{vC}, 15, v1")
    e(f"v_bfe_u32 v{vR4}, v1, 2, 2")
    e(f"v_and_b32 v{vC4}, 3, v1")
    e(f"v_lshrrev_b32 v{vL3}, 3, v1")
    e(f"v_and_b32 v{vL7}, 7, v1")
    vXD, vWD, vXA, vWA = 10, 14, 18, 26
    vT = 28
    e(f"v_lshl_add_u32 v{vT}, v2, 5, v{vL3}")
    for n in range(4):
        e(f"v_xor_b32 v{vT+1}, {4*(n & 1)}, v{vG}")
        e(f"v_xor_b32 v{vT+1}, v{vT+1}, v{vL7}")
        e(f"v_lshlrev_b32 v{vT+1}, 4, v{vT+1}")
        e(f"v_add_u32 v{vT+2}, {7*n}, v{vT}")
        e(f"v_lshl_add_u32 v{vXD+n}, v{vT+2}, 10, v{vT+1}")
    e(f"v_lshl_add_u32 v{vT}, v2, 4, v{vL3}")
    e(f"v_and_b32 v{vT+3}, 1, v{vG}")
    e(f"v_lshlrev_b32 v{vT+3}, 1, v{vT+3}")
    e(f"v_xor_b32 v{vT+3}, v{vT+3}, v{vL7}")
    e("s_movk_i32 s3, 3072")
    for a in range(2):
        for n in range(2):
            i = 2*a + n
            e(f"v_xor_b32 v{vT+1}, {4*n}, v{vT+3}")
            e(f"v_lshlrev_b32 v{vT+1}, 4, v{vT+1}")
            e(f"v_add_u32 v{vT+2}, {8*n}, v{vT}")
            e(f"v_mad_u32_u24 v{vWD+i}, v{vT+2}, s3, v{vT+1}")
            cst = a*1024 - i*1024 + 2048
            if cst: e(f"v_add_u32 v{vWD+i}, {cst}, v{vWD+i}")
    e(f"v_lshrrev_b32 v{vT}, 1, v{vC}")
    e(f"v_xor_b32 v{vT}, v{vT}, v{vG}")
    e(f"v_lshlrev_b32 v{vT}, 4, v{vT}")
    e(f"v_lshl_add_u32 v{vT}, v{vC}, 7, v{vT}")
    e(f"v_lshl_add_u32 v{vT}, v2, 12, v{vT}")
    for j in range(4):
        for kk in range(2):
            e(f"v_xor_b32 v{vXA+2*j+kk}, {j*4096 + kk*64}, v{vT}")
    e(f"v_and_b32 v{vT}, 1, v{vG}")
    e(f"v_lshrrev_b32 v{vT+1}, 1, v{vR4}")
    e(f"v_lshl_or_b32 v{vT+1}, v{vT}, 1, v{vT+1}")
    e(f"v_xor_b32 v{vT+1}, v{vT+1}, v2")
    e(f"v_lshlrev_b32 v{vT+1}, 5, v{vT+1}")
    e(f"v_lshl_add_u32 v{vT+1}, v{vC4}, 3, v{vT+1}")
    e(f"v_lshl_add_u32 v{vT}, v{vT}, 3, v{vR4}")
    e(f"v_lshl_add_u32 v{vT+1}, v{vT}, 7, v{vT+1}")
    e(f"v_lshrrev_b32 v{vT}, 1, v{vG}")
    e(f"v_lshl_add_u32 v{vT+1}, v{vT}, 12, v{vT+1}")
    e(f"v_add_u32 v{vWA}, {K1_WB}, v{vT+1}")
    accA, accB, csA, csB, rs, sq = 64, 96, 128, 132, 136, 144
    XF, WF, ONES = 160, 224, 240
    vPH, vID = 244, 246
    vPL = 248
    for r in range(64, 146): e(f"v_mov_b32 v{r}, 0")
    for r in range(4): e(f"v_mov_b32 v{ONES+r}, 0x3f803f80")
    e("s_waitcnt lgkmcnt(0)")
    srd(e, 16, 4, S*D*2)
    srd(e, 20, 6, D*3*D*2)
    srd(e, 24, 8, H*16*16*2)
    srd(e, 28, 10, S*F*2)
    srd(e, 32, 12, WS_USED)
    sXB, sWB = 66, 67
    e(f"s_lshl_b32 s{sXB}, s{sTB}, 17")
    e(f"s_lshl_b32 s{sWB}, s{sHG}, 7")
    e(f"s_cmp_eq_u32 s{sROLE}, 0")
    e(f"s_cselect_b32 s3, 1024, 0")
    e(f"s_add_u32 s{sWB}, s{sWB}, s3")
    e("s_sub_u32 s20, s20, 2048")
    e("s_subb_u32 s21, s21, 0")
    e(f"s_mov_b32 s22, {D*3*D*2 + 2048}")
    e(f"s_lshl_b32 s{sM0X}, s{sW}, 12")
    e(f"s_add_u32 s{sM0W}, s{sM0X}, {K1_WB}")

    def dma_list(nW, sStage, slot_s):
        pre = [f"s_lshl_b32 s{sXO}, s{sStage}, 7", f"s_add_u32 s{sXO}, s{sXO}, s{sXB}",
               f"s_mul_i32 s{sWO}, s{sStage}, {64*3072}", f"s_add_u32 s{sWO}, s{sWO}, s{sWB}"]
        G = []
        for n in range(4):
            g = []
            if n == 0: g += pre + [f"s_add_u32 m0, s{sM0X}, s{slot_s}"]
            g.append(f"buffer_load_dwordx4 v{vXD+n}, s[16:19], s{sXO} offen offset:{n*1024} lds")
            G.append(g)
        for i in range(2*nW):
            g = []
            if i == 0: g.append(f"s_add_u32 m0, s{sM0W}, s{slot_s}")
            g.append(f"buffer_load_dwordx4 v{vWD+i}, s[20:23], s{sWO} offen offset:{i*1024} lds")
            G.append(g)
        return G

    sRS = 68
    sISL = 69
    def role_code(role):
        nW = 2 if role == "kv" else 1
        nps = 4 + 2*nW
        lab = f"{k}_{role}"
        e(f"v_lshlrev_b32 v{vT}, 7, v{vG}")
        e(f"v_lshl_add_u32 v{vT}, v{vC}, 1, v{vT}")
        e(f"s_lshl_b32 s3, s{sHEAD}, 9")
        for i in range(4):
            e(f"buffer_load_ushort v{vPL+i}, v{vT}, s[24:27], s3 offen offset:{i*32}")
        for st in range(2):
            e(f"s_add_u32 s{sRS}, s{sROT}, {st}")
            e(f"s_and_b32 s{sRS}, s{sRS}, 7")
            e(f"s_mov_b32 s{sISL}, {st*16384}")
            for g in dma_list(nW, sRS, sISL):
                for t in g: e(t)
        e(f"s_mov_b32 s{sST}, 0")
        e(f"s_mov_b32 s{sSLOT}, 0")
        e(f"s_mov_b32 s{sISL}, {2*16384}")

        def stage(vm_wait, dma, extra=None):
            e(f"s_waitcnt vmcnt({vm_wait})")
            e("s_barrier")
            lg = Cnt(e, "lgkmcnt", 15)
            def rdW(kk):
                for a in range(nW):
                    for h in range(2):
                        e(f"ds_read_b64_tr_b16 v[{WF+8*kk+4*a+2*h}:{WF+8*kk+4*a+2*h+1}], v{vWA} offset:{kk*8192 + a*2048 + h*512}")
                        lg.issue(("W", kk))
            def rdX(kk, t):
                b = XF + 32*kk + 4*t
                e(f"ds_read_b128 v[{b}:{b+3}], v{vXA + 2*(t >> 1) + kk} offset:{(t & 1)*2048}")
                lg.issue(("X", kk, t))
            rdW(0)
            for t in range(8): rdX(0, t)
            G = []
            if dma:
                e(f"s_add_u32 s{sRS}, s{sROT}, s{sST}")
                e(f"s_add_u32 s{sRS}, s{sRS}, 2")
                e(f"s_and_b32 s{sRS}, s{sRS}, 7")
                G = dma_list(nW, sRS, sISL)
            if extra: G = extra
            G = list(G)
            for kk in range(2):
                wa = f"v[{WF+8*kk}:{WF+8*kk+3}]"; wb = f"v[{WF+8*kk+4}:{WF+8*kk+7}]"
                for t in range(8):
                    lg.wait(("X", kk, t))
                    x = f"v[{XF+32*kk+4*t}:{XF+32*kk+4*t+3}]"
                    e(f"v_mfma_f32_16x16x32_bf16 v[{accA+4*t}:{accA+4*t+3}], {wa}, {x}, v[{accA+4*t}:{accA+4*t+3}]")
                    if kk == 0:
                        if t == 0: rdW(1)
                        rdX(1, t)
                    if nW == 2:
                        e(f"v_mfma_f32_16x16x32_bf16 v[{accB+4*t}:{accB+4*t+3}], {x}, {wb}, v[{accB+4*t}:{accB+4*t+3}]")
                    if t < 2:
                        e(f"v_mfma_f32_16x16x32_bf16 v[{rs+4*t}:{rs+4*t+3}], v[{ONES}:{ONES+3}], {x}, v[{rs+4*t}:{rs+4*t+3}]")
                        for r in range(4):
                            e(f"v_dot2c_f32_bf16 v{sq+t}, v{XF+32*kk+4*t+r}, v{XF+32*kk+4*t+r}")
                    if t == 2:
                        e(f"v_mfma_f32_16x16x32_bf16 v[{csA}:{csA+3}], {wa}, v[{ONES}:{ONES+3}], v[{csA}:{csA+3}]")
                    if t == 3 and nW == 2:
                        e(f"v_mfma_f32_16x16x32_bf16 v[{csB}:{csB+3}], v[{ONES}:{ONES+3}], {wb}, v[{csB}:{csB+3}]")
                    ng = 1 if len(G) <= (16 - (8*kk + t)) else 2
                    for _ in range(ng):
                        if G:
                            for tx in G.pop(0): e(tx)
            for g in G:
                for tx in g: e(tx)
            e(f"s_add_u32 s{sSLOT}, s{sSLOT}, 1")
            e(f"s_cmp_eq_u32 s{sSLOT}, 3")
            e(f"s_cselect_b32 s{sDEL}, -2, 1")
            e(f"s_cselect_b32 s{sSLOT}, 0, s{sSLOT}")
            e(f"s_lshl_b32 s{sDEL}, s{sDEL}, 14")
            e(f"s_add_u32 s{sISL}, s{sISL}, 16384")
            e(f"s_cmp_eq_u32 s{sISL}, {3*16384}")
            e(f"s_cselect_b32 s{sISL}, 0, s{sISL}")
            for r in list(range(vXA, vXA+8)) + [vWA]:
                e(f"v_add_u32 v{r}, s{sDEL}, v{r}")
        e.label(f"{lab}_loop")
        stage(nps, True)
        e(f"s_add_u32 s{sST}, s{sST}, 1")
        e(f"s_cmp_lt_u32 s{sST}, 6")
        e(f"s_cbranch_scc1 {lab}_loop")
        nextra = 0
        extra = None
        if role == "q":
            extra = []
            vHD = 32
            vW1D = 36
            pre = [f"v_lshl_add_u32 v{vT}, v2, 5, v{vL3}",
                   f"v_and_b32 v{vT+3}, 1, v{vG}", f"v_lshlrev_b32 v{vT+3}, 1, v{vT+3}", f"v_xor_b32 v{vT+3}, v{vT+3}, v{vL7}"]
            for n in range(4):
                pre += [f"v_xor_b32 v{vT+1}, {4*(n & 1)}, v{vT+3}", f"v_lshlrev_b32 v{vT+1}, 4, v{vT+1}",
                        f"v_add_u32 v{vT+2}, {7*n}, v{vT}", f"v_lshl_add_u32 v{vHD+n}, v{vT+2}, 10, v{vT+1}"]
            pre += [f"v_lshlrev_b32 v{vW1D}, 4, v1"]
            for t in pre: e(t)
            g0 = [f"s_lshl_b32 s{sXO}, s{sHG}, 7", f"s_add_u32 s{sXO}, s{sXO}, s{sXB}", f"s_add_u32 m0, s{sM0X}, {K1_HX}"]
            for n in range(4):
                extra.append((g0 if n == 0 else []) + [f"buffer_load_dwordx4 v{vHD+n}, s[16:19], s{sXO} offen offset:{n*1024} lds"])
            sQI = 70
            g1 = [f"s_lshl_b32 s{sQI}, s{sTB}, 3", f"s_add_u32 s{sQI}, s{sQI}, s{sHG}",
                  f"s_mul_i32 s{sWO}, s{sQI}, {16*F*2}", f"s_mul_i32 s3, s{sW}, {11*1024}", f"s_add_u32 s{sWO}, s{sWO}, s3",
                  f"s_add_u32 s{sT0}, s3, {K1_W1}"]
            for i in range(11):
                g = list(g1) if i == 0 else []
                if i % 4 == 0:
                    g += [f"s_add_u32 m0, s{sT0}, {i*1024}"]
                    if i: g += [f"s_add_u32 s{sWO}, s{sWO}, 4096"]
                if i == 10:
                    g += [f"s_cmp_eq_u32 s{sW}, 3", f"s_cselect_b32 s{sWO}, {OOB}, s{sWO}"]
                g.append(f"buffer_load_dwordx4 v{vW1D}, s[28:31], s{sWO} offen offset:{(i % 4)*1024} lds")
                extra.append(g)
            nextra = len(extra)
        stage(nps, False, extra)
        stage(nextra, False)
        stamp_mid(e, 0)
        e(f"v_permlane32_swap_b32 v{sq}, v{sq+1}")
        e(f"v_add_f32 v{sq}, v{sq}, v{sq+1}")
        e(f"v_mov_b32 v{sq+1}, v{sq}")
        e(f"v_permlane16_swap_b32 v{sq}, v{sq+1}")
        e(f"v_add_f32 v{sq}, v{sq}, v{sq+1}")
        e("v_cmp_gt_u32 vcc, 32, v1")
        e(f"v_cndmask_b32 v{vT}, v{rs+4}, v{rs}, vcc")
        e(f"v_mul_f32 v{vT}, {f32(1.0/D)}, v{vT}")
        e(f"v_mul_f32 v{vT+1}, v{vT}, v{vT}")
        e(f"s_mov_b32 s3, {f32(1.0/D)}")
        e(f"v_fma_f32 v{vT+1}, v{sq}, s3, -v{vT+1}")
        e(f"v_max_f32 v{vT+1}, 0, v{vT+1}")
        e(f"v_add_f32 v{vT+2}, {f32(1e-5)}, v{vT+1}")
        e(f"v_rsq_f32 v{vT+2}, v{vT+2}")
        e(f"v_mul_f32_e64 v{vT+3}, -v{vT}, v{vT+2}")
        vS = 40
        e(f"v_lshrrev_b32 v{vS}, 5, v1")
        e(f"v_lshl_add_u32 v{vS}, v{vS}, 4, v{vC}")
        e(f"v_lshl_add_u32 v{vS}, v2, 5, v{vS}")
        e(f"v_lshlrev_b32 v{vS}, 2, v{vS}")
        e(f"v_add_u32 v{vS}, {K1_ST}, v{vS}")
        e(f"ds_write_b32 v{vS}, v{vT+2}")
        e(f"ds_write_b32 v{vS}, v{vT+3} offset:512")
        if role == "q":
            e(f"v_mul_f32 v{vS+1}, v{vT+2}, v{vT+2}")
            e(f"v_mul_f32 v{vS+1}, v{vS+1}, v{vT+1}")
            e(f"v_add_f32 v{vS+1}, {f32(1e-5)}, v{vS+1}")
            e(f"v_rsq_f32 v{vS+1}, v{vS+1}")
            e(f"v_mul_f32 v{vS+1}, v{vS+1}, v{vT+2}")
            e(f"v_mul_f32_e64 v{vS+2}, -v{vT}, v{vS+1}")
            e(f"ds_write_b32 v{vS}, v{vS+1} offset:1024")
            e(f"ds_write_b32 v{vS}, v{vS+2} offset:1536")
        e(f"v_lshl_or_b32 v{vPH}, v{vPL+1}, 16, v{vPL}")
        e(f"v_lshl_or_b32 v{vPH+1}, v{vPL+3}, 16, v{vPL+2}")
        e("s_waitcnt lgkmcnt(0)")
        e("s_barrier")
        CS = XF
        vCB = 41
        e(f"v_lshlrev_b32 v{vCB}, 2, v{vC}")
        e(f"v_lshl_add_u32 v{vCB}, v2, 7, v{vCB}")
        e(f"v_add_u32 v{vCB}, {K1_ST}, v{vCB}")
        for j in range(4):
            e(f"v_xor_b32 v{vT}, {j*128}, v{vCB}")
            for u in range(2):
                t = 2*j + u
                e(f"ds_read2_b32 v[{CS+2*t}:{CS+2*t+1}], v{vT} offset0:{u*16} offset1:{128+u*16}")
        RS_ = XF + 16
        vRB = 42
        if role == "kv":
            e(f"v_lshlrev_b32 v{vRB}, 4, v{vG}")
            e(f"v_lshl_add_u32 v{vRB}, v2, 7, v{vRB}")
            e(f"v_add_u32 v{vRB}, {K1_ST}, v{vRB}")
            e(f"v_lshlrev_b32 v{vT}, 2, v{vG}")
            e(f"v_sub_u32 v{vT}, v{vC}, v{vT}")
            e(f"v_mov_b32 v{vT+1}, 0x3f80")
            e(f"v_mov_b32 v{vT+2}, 0x3f800000")
            for rr in range(2):
                e(f"v_cmp_eq_u32 vcc, {2*rr}, v{vT}")
                e(f"v_cndmask_b32 v{vID+rr}, 0, v{vT+1}, vcc")
                e(f"v_cmp_eq_u32 vcc, {2*rr+1}, v{vT}")
                e(f"v_cndmask_b32 v{vID+rr}, v{vID+rr}, v{vT+2}, vcc")
        e("s_waitcnt lgkmcnt(0)")
        KB = XF + 16
        for t in range(8):
            for r in range(4):
                e(f"v_mul_f32 v{vT+r}, v{csA+r}, v{CS+2*t+1}")
            for r in range(4):
                e(f"v_fma_f32 v{accA+4*t+r}, v{accA+4*t+r}, v{CS+2*t}, v{vT+r}")
            e(f"v_cvt_pk_bf16_f32 v{KB+2*t}, v{accA+4*t}, v{accA+4*t+1}")
            e(f"v_cvt_pk_bf16_f32 v{KB+2*t+1}, v{accA+4*t+2}, v{accA+4*t+3}")
        for t in range(8):
            e(f"v_mfma_f32_16x16x16_bf16 v[{accA+4*t}:{accA+4*t+3}], v[{vPH}:{vPH+1}], v[{KB+2*t}:{KB+2*t+1}], 0")
        PH = XF + 32
        TA, TB_ = 10, 34
        vRB2 = 60
        if role == "kv": e(f"v_mov_b32 v{vRB2}, v{vRB}")
        for half in range(2):
            t0 = 4*half
            la = softmax_pair(accA+4*t0, accA+4*t0+4, PH+4*t0, PH+4*t0+4, TA, sL, sNL)
            lb = softmax_pair(accA+4*t0+8, accA+4*t0+12, PH+4*t0+8, PH+4*t0+12, TB_, sL, sNL)
            for tx in interleave(la, lb): e(tx)
        vL16 = 58
        e(f"v_lshlrev_b32 v{vL16}, 4, v1")
        if role == "q":
            e(f"s_lshl_b32 s{sT0}, s{sTB}, 18")
            e(f"s_lshl_b32 s3, s{sHEAD}, 10")
            e(f"s_add_u32 s{sT0}, s{sT0}, s3")
            e(f"s_add_u32 s{sT0}, s{sT0}, {WS_PHQ}")
            e(f"s_lshl_b32 s{sT1}, s{sW}, 16")
            for t in range(8):
                e(f"s_xor_b32 s3, s{sT1}, {t*32768}")
                e(f"s_add_u32 s3, s3, s{sT0}")
                e(f"buffer_store_dwordx4 v[{PH+4*t}:{PH+4*t+3}], v{vL16}, s[32:35], s3 offen")
            e("s_waitcnt vmcnt(19)")
            vH = 10
            e(f"v_and_b32 v{vH+1}, 1, v{vG}")
            e(f"v_lshrrev_b32 v{vH+2}, 1, v{vR4}")
            e(f"v_lshl_or_b32 v{vH+2}, v{vH+1}, 1, v{vH+2}")
            e(f"v_lshlrev_b32 v{vH+2}, 1, v{vH+2}")
            e(f"v_xor_b32 v{vH+2}, v{vH+2}, v{vC4}")
            e(f"v_lshlrev_b32 v{vH+2}, 4, v{vH+2}")
            e(f"v_lshl_add_u32 v{vH+1}, v{vG}, 3, v{vR4}")
            e(f"v_lshl_add_u32 v{vH+1}, v2, 5, v{vH+1}")
            e(f"v_lshl_add_u32 v{vH}, v{vH+1}, 7, v{vH+2}")
            e(f"v_add_u32 v{vH}, {K1_HX}, v{vH}")
            e(f"v_xor_b32 v{vH+1}, 64, v{vH}")
            e(f"v_lshlrev_b32 v{vH+2}, 5, v{vG}")
            e(f"v_lshl_add_u32 v{vH+2}, v2, 7, v{vH+2}")
            e(f"v_add_u32 v{vH+2}, {K1_ST}, v{vH+2}")
            HA, HB, HXr, HT_ = 64, 72, 80, 96
            e(f"ds_read_b128 v[{HA}:{HA+3}], v{vH+2} offset:1024")
            e(f"ds_read_b128 v[{HA+4}:{HA+7}], v{vH+2} offset:1040")
            e(f"ds_read_b128 v[{HB}:{HB+3}], v{vH+2} offset:1536")
            e(f"ds_read_b128 v[{HB+4}:{HB+7}], v{vH+2} offset:1552")
            for dt in range(4):
                p, ee = dt >> 1, dt & 1
                for h in range(2):
                    e(f"ds_read_b64_tr_b16 v[{HXr+4*dt+2*h}:{HXr+4*dt+2*h+1}], v{vH+p} offset:{h*512 + ee*8}")
            e("s_waitcnt lgkmcnt(0)")
            e(f"s_lshl_b32 s{sT0}, s{sHG}, 18")
            e(f"s_lshl_b32 s3, s{sTB}, 12")
            e(f"s_add_u32 s{sT0}, s{sT0}, s3")
            e(f"s_lshl_b32 s3, s{sW}, 10")
            e(f"s_add_u32 s{sT0}, s{sT0}, s3")
            if WS_HT: e(f"s_add_u32 s{sT0}, s{sT0}, {WS_HT}")
            for dt in range(4):
                for i2 in range(4):
                    src = HXr + 4*dt + i2
                    e(f"v_lshlrev_b32 v{HT_}, 16, v{src}")
                    e(f"v_and_b32 v{HT_+1}, 0xffff0000, v{src}")
                    e(f"v_fma_f32 v{HT_}, v{HT_}, v{HA+2*i2}, v{HB+2*i2}")
                    e(f"v_fma_f32 v{HT_+1}, v{HT_+1}, v{HA+2*i2+1}, v{HB+2*i2+1}")
                    e(f"v_cvt_pk_bf16_f32 v{src}, v{HT_}, v{HT_+1}")
                e(f"s_add_u32 s3, s{sT0}, {dt*65536}")
                e(f"buffer_store_dwordx4 v[{HXr+4*dt}:{HXr+4*dt+3}], v{vL16}, s[32:35], s3 offen")
            e("s_waitcnt vmcnt(12)")
            e("s_barrier")
            vA, vO = 10, 11
            e(f"v_and_b32 v{vA}, 1, v{vG}")
            e(f"v_lshl_add_u32 v{vO}, v{vA}, 3, v{vR4}")
            e(f"s_movk_i32 s3, {F*2}")
            e(f"v_mul_lo_u32 v{vO}, v{vO}, s3")
            e(f"v_lshrrev_b32 v{vA+2}, 1, v{vG}")
            e(f"v_lshl_add_u32 v{vO}, v{vA+2}, 5, v{vO}")
            e(f"v_lshl_add_u32 v{vO}, v{vC4}, 3, v{vO}")
            e(f"v_lshl_add_u32 v{vO}, v2, 6, v{vO}")
            e(f"v_add_u32 v{vA+3}, {K1_W1}, v{vO}")
            e(f"v_lshlrev_b32 v{vO}, 16, v{vA+2}")
            e(f"v_lshl_add_u32 v{vO}, v{vA}, 8, v{vO}")
            e(f"v_lshl_add_u32 v{vO}, v{vC}, 4, v{vO}")
            e(f"v_lshl_add_u32 v{vO}, v2, 17, v{vO}")
            e(f"s_lshl_b32 s{sT0}, s70, 9")
            srd(e, 36, 12, 86*65536, WS_W1F)
            WR = 100
            for i in range(11):
                e(f"ds_read_b64_tr_b16 v[{WR+4*i}:{WR+4*i+1}], v{vA+3} offset:{i*256}")
                e(f"ds_read_b64_tr_b16 v[{WR+4*i+2}:{WR+4*i+3}], v{vA+3} offset:{i*256 + 4*F*2}")
                if i == 6: e("s_waitcnt lgkmcnt(6)")
            for i in range(11):
                if i >= 4: e(f"s_waitcnt lgkmcnt({2*(10-i)})")
                e(f"s_add_u32 s3, s{sT0}, {i*4*131072}")
                e(f"buffer_store_dwordx4 v[{WR+4*i}:{WR+4*i+3}], v{vO}, s[36:39], s3 offen")
        else:
            KVP_, KVM, ZP_, ZM = 64, 68, 72, 76
            TT = 80
            TP = 10
            VP = 20
            RA = 24
            VT = 40
            for r in range(KVP_, KVP_+16): e(f"v_mov_b32 v{r}, 0")
            for j in range(4):
                e(f"v_xor_b32 v{VT}, {j*128}, v{vRB2}")
                for u in range(2):
                    e(f"ds_read_b128 v[{RA+4*u}:{RA+4*u+3}], v{VT} offset:{u*64}")
                    e(f"ds_read_b128 v[{RA+8+4*u}:{RA+8+4*u+3}], v{VT} offset:{512+u*64}")
                for u in range(2):
                    t = 2*j + u
                    for sg in range(2):
                        d = TT + 8*sg + 4*u
                        e(f"v_mfma_f32_16x16x16_bf16 v[{d}:{d+3}], v[{PH+4*t+2*sg}:{PH+4*t+2*sg+1}], v[{vID}:{vID+1}], 0")
                e("s_waitcnt lgkmcnt(0)")
                for u in range(2):
                    t = 2*j + u
                    for r in range(4):
                        e(f"v_mul_f32 v{VT+r}, v{csB}, v{RA+8+4*u+r}")
                    for r in range(4):
                        e(f"v_fma_f32 v{VT+r}, v{accB+4*t+r}, v{RA+4*u+r}, v{VT+r}")
                    e(f"v_cvt_pk_bf16_f32 v{VP+2*u}, v{VT}, v{VT+1}")
                    e(f"v_cvt_pk_bf16_f32 v{VP+2*u+1}, v{VT+2}, v{VT+3}")
                for sg in range(2):
                    for u in range(2):
                        d = TT + 8*sg + 4*u
                        e(f"v_cvt_pk_bf16_f32 v{TP+4*sg+2*u}, v{d}, v{d+1}")
                        e(f"v_cvt_pk_bf16_f32 v{TP+4*sg+2*u+1}, v{d+2}, v{d+3}")
                for sg in range(2):
                    a_ = f"v[{TP+4*sg}:{TP+4*sg+3}]"
                    e(f"v_mfma_f32_16x16x32_bf16 v[{KVP_+4*sg}:{KVP_+4*sg+3}], {a_}, v[{VP}:{VP+3}], v[{KVP_+4*sg}:{KVP_+4*sg+3}]")
                    e(f"v_mfma_f32_16x16x32_bf16 v[{ZP_+4*sg}:{ZP_+4*sg+3}], {a_}, v[{ONES}:{ONES+3}], v[{ZP_+4*sg}:{ZP_+4*sg+3}]")
            e(f"s_lshl_b32 s{sT0}, s{sHEAD}, 4")
            e(f"s_add_u32 s{sT0}, s{sT0}, s{sTB}")
            e(f"s_lshl_b32 s3, s{sT0}, 11")
            e(f"s_add_u32 s3, s3, {WS_KVP}")
            e(f"buffer_store_dwordx4 v[{KVP_}:{KVP_+3}], v{vL16}, s[32:35], s3 offen")
            e(f"buffer_store_dwordx4 v[{KVM}:{KVM+3}], v{vL16}, s[32:35], s3 offen offset:1024")
            e(f"s_lshl_b32 s3, s{sT0}, 7")
            e(f"s_add_u32 s3, s3, {WS_ZP}")
            e(f"v_lshlrev_b32 v{VT}, 4, v{vG}")
            e("s_mov_b32 exec_lo, 0x00010001")
            e("s_mov_b32 exec_hi, 0x00010001")
            e(f"buffer_store_dwordx4 v[{ZP_}:{ZP_+3}], v{VT}, s[32:35], s3 offen")
            e(f"buffer_store_dwordx4 v[{ZM}:{ZM+3}], v{VT}, s[32:35], s3 offen offset:64")
            e("s_mov_b64 exec, -1")
        stamp_mid(e, 1)
        stamp_end(e, 0, 12)
        e("s_endpgm")

    e(f"s_cmp_eq_u32 s{sROLE}, 0")
    e(f"s_cbranch_scc0 {k}_qrole")
    role_code("kv")
    e.label(f"{k}_qrole")
    role_code("q")
    e.label(f"{k}_done")
    e("s_endpgm")
    return k, 256, 256, K1_LDS, 256

K2_LDS = 4*3*4096
def gen_k2(e):
    k = "k2_kernel"
    e.raw(f".globl {k}\n.p2align 8\n.type {k},@function\n{k}:")
    stamp_start(e)
    e("s_cmp_ge_u32 s2, 240")
    e(f"s_cbranch_scc1 {k}_done")
    e("s_load_dwordx2 s[4:5], s[0:1], 48")
    e("s_load_dwordx2 s[12:13], s[0:1], 88")
    sW, sX, sI, sDQ, sFQ, sROT, sJ, sAO, sBO, sAB, sBB, sT0, sT1 = range(48, 61)
    e("v_and_b32 v1, 63, v0")
    e("v_lshrrev_b32 v2, 6, v0")
    e(f"v_readfirstlane_b32 s{sW}, v2")
    e(f"s_and_b32 s{sX}, s2, 7")
    e(f"s_lshr_b32 s{sI}, s2, 3")
    vG, vC, vL16 = 3, 4, 5
    e(f"v_lshrrev_b32 v{vG}, 4, v1")
    e(f"v_and_b32 v{vC}, 15, v1")
    e(f"v_lshlrev_b32 v{vL16}, 4, v1")
    e(f"s_cmp_ge_u32 s{sI}, 22")
    e(f"s_cbranch_scc1 {k}_orole")
    e(f"s_mul_i32 s3, s{sX}, 22")
    e(f"s_add_u32 s3, s3, s{sI}")
    e(f"s_lshr_b32 s{sFQ}, s3, 3")
    e(f"s_and_b32 s{sDQ}, s3, 7")
    e(f"s_mul_i32 s{sROT}, s{sFQ}, 5")
    e(f"s_lshl_b32 s3, s{sDQ}, 1")
    e(f"s_add_u32 s{sROT}, s{sROT}, s3")
    vAO, vBO = 8, 12
    for j in range(4):
        e(f"v_add_u32 v{vAO+j}, {j*65536}, v{vL16}")
    e(f"v_lshl_add_u32 v6, v2, 16, v{vL16}")
    for j in range(4):
        e(f"v_xor_b32 v{vBO+j}, {j*65536}, v6")
    ACC = 64
    RING = 128
    for r in range(ACC, ACC+64): e(f"v_mov_b32 v{r}, 0")
    e(f"s_lshl_b32 s{sAB}, s{sFQ}, 18")
    e(f"s_lshl_b32 s{sBB}, s{sDQ}, 18")
    e(f"s_lshl_b32 s3, s{sW}, 14")
    e(f"s_add_u32 s{sAB}, s{sAB}, s3")
    e(f"s_add_u32 s{sBB}, s{sBB}, s3")
    e("s_waitcnt lgkmcnt(0)")
    srd(e, 16, 12, 86*65536, WS_W1F)
    srd(e, 20, 12, 32*65536, WS_HT)
    srd(e, 24, 4, F*2)
    srd(e, 28, 12, 32*43*1024, WS_U)
    vB1 = 16
    e(f"v_lshlrev_b32 v7, 3, v{vG}")
    e(f"s_lshl_b32 s3, s{sFQ}, 7")
    for ft in range(4):
        e(f"buffer_load_dwordx2 v[{vB1+2*ft}:{vB1+2*ft+1}], v7, s[24:27], s3 offen offset:{ft*32}")
    def loads(slot, valid=True):
        L = [[f"s_add_u32 s3, s{sJ}, s{sROT}", "s_and_b32 s3, s3, 15", "s_lshl_b32 s3, s3, 10",
              f"s_add_u32 s{sAO}, s{sAB}, s3", f"s_add_u32 s{sBO}, s{sBB}, s3", f"s_add_u32 s{sJ}, s{sJ}, 1"]]
        for j in range(4):
            b = RING + 32*slot + 4*j
            L.append([f"buffer_load_dwordx4 v[{b}:{b+3}], v{vAO+j}, s[16:19], s{sAO} offen"])
            b += 16
            L.append([f"buffer_load_dwordx4 v[{b}:{b+3}], v{vBO+j}, s[20:23], s{sBO} offen"])
        L[1] = L[0] + L[1]
        return L[1:]
    e(f"s_mov_b32 s{sJ}, 0")
    for sl in range(3):
        for g in loads(sl):
            for t in g: e(t)
    def step(slot, vm, nxt):
        e(f"s_waitcnt vmcnt({vm})")
        G = loads((slot + 3) % 4) if nxt else []
        n = 0
        for q in range(4):
            for ft in range(4):
                a_ = RING + 32*slot + 4*ft; b_ = RING + 32*slot + 16 + 4*q; c_ = ACC + 16*q + 4*ft
                e(f"v_mfma_f32_16x16x32_bf16 v[{c_}:{c_+3}], v[{a_}:{a_+3}], v[{b_}:{b_+3}], v[{c_}:{c_+3}]")
                if n % 2 == 0 and G:
                    for t in G.pop(0): e(t)
                n += 1
    sIT = 62
    e(f"s_mov_b32 s{sIT}, 0")
    e.label(f"{k}_loop")
    for sl in range(4): step(sl, 16, True)
    e(f"s_add_u32 s{sIT}, s{sIT}, 1")
    e(f"s_cmp_lt_u32 s{sIT}, 3")
    e(f"s_cbranch_scc1 {k}_loop")
    step(0, 16, True)
    step(1, 16, False)
    step(2, 8, False)
    step(3, 0, False)
    stamp_mid(e, 0)
    vW = 24
    e(f"v_mul_u32_u24 v{vW+4}, {3*4096}, v2")
    e(f"v_add_u32 v{vW+4}, v{vW+4}, v{vL16}")
    for q in range(1, 4):
        e(f"v_xor_b32 v{vW+q}, {q}, v2")
        e(f"v_mul_u32_u24 v{vW+q}, {3*4096}, v{vW+q}")
        e(f"v_add_u32 v{vW+q}, v{vW+q}, v{vL16}")
    for q in range(1, 4):
        for ft in range(4):
            c_ = ACC + 16*q + 4*ft
            e(f"ds_write_b128 v{vW+q}, v[{c_}:{c_+3}] offset:{(q-1)*4096 + ft*1024}")
    e("s_waitcnt lgkmcnt(0)")
    e("s_barrier")
    for q in range(3):
        for ft in range(4):
            b = RING + 16*q + 4*ft
            e(f"ds_read_b128 v[{b}:{b+3}], v{vW+4} offset:{q*4096 + ft*1024}")
    vBF = 32
    for ft in range(4):
        for h in range(2):
            e(f"v_lshlrev_b32 v{vBF+4*ft+2*h}, 16, v{vB1+2*ft+h}")
            e(f"v_and_b32 v{vBF+4*ft+2*h+1}, 0xffff0000, v{vB1+2*ft+h}")
    for i in range(16): e(f"v_add_f32 v{ACC+i}, v{ACC+i}, v{vBF+i}")
    for q in range(3):
        e(f"s_waitcnt lgkmcnt({4*(2-q)})")
        for i in range(16): e(f"v_add_f32 v{ACC+i}, v{ACC+i}, v{RING+16*q+i}")
    c = 0.7978845608028654
    k1 = -2*c*LOG2E; k2 = k1*0.044715
    e(f"s_mov_b32 s{sT0}, {f32(k2)}")
    e(f"v_mov_b32 v{vW}, {f32(k1)}")
    T = RING
    for i in range(16): e(f"v_mul_f32 v{T+i}, v{ACC+i}, v{ACC+i}")
    for i in range(16): e(f"v_fma_f32 v{T+i}, v{T+i}, s{sT0}, v{vW}")
    for i in range(16): e(f"v_mul_f32 v{T+i}, v{T+i}, v{ACC+i}")
    for i in range(16): e(f"v_exp_f32 v{T+i}, v{T+i}")
    for i in range(16): e(f"v_add_f32 v{T+i}, 1.0, v{T+i}")
    for i in range(16): e(f"v_rcp_f32 v{T+i}, v{T+i}")
    for i in range(16): e(f"v_mul_f32 v{T+i}, v{T+i}, v{ACC+i}")
    for i in range(8): e(f"v_cvt_pk_bf16_f32 v{ACC+i}, v{T+2*i}, v{T+2*i+1}")
    e(f"s_lshl_b32 s3, s{sDQ}, 2")
    e(f"s_add_u32 s3, s3, s{sW}")
    e(f"s_mul_i32 s3, s3, 43")
    e(f"s_lshl_b32 s{sT0}, s{sFQ}, 1")
    e(f"s_add_u32 s3, s3, s{sT0}")
    e(f"s_lshl_b32 s3, s3, 10")
    e(f"buffer_store_dwordx4 v[{ACC}:{ACC+3}], v{vL16}, s[28:31], s3 offen")
    e(f"s_cmp_eq_u32 s{sFQ}, 21")
    e(f"s_cselect_b32 s3, {OOB}, s3")
    e(f"buffer_store_dwordx4 v[{ACC+4}:{ACC+7}], v{vL16}, s[28:31], s3 offen offset:1024")
    stamp_mid(e, 1)
    stamp_end(e, 1, 12)
    e("s_endpgm")
    e.label(f"{k}_orole")
    sTQ, sHEAD = sDQ, sFQ
    e(f"s_sub_u32 s{sI}, s{sI}, 22")
    e(f"s_lshr_b32 s{sTQ}, s{sX}, 1")
    e(f"s_lshl_b32 s{sTQ}, s{sTQ}, 1")
    e(f"s_lshr_b32 s3, s{sI}, 2")
    e(f"s_add_u32 s{sTQ}, s{sTQ}, s3")
    e(f"s_and_b32 s{sHEAD}, s{sX}, 1")
    e(f"s_lshl_b32 s{sHEAD}, s{sHEAD}, 2")
    e(f"s_and_b32 s3, s{sI}, 3")
    e(f"s_add_u32 s{sHEAD}, s{sHEAD}, s3")
    e(f"s_lshl_b32 s{sHEAD}, s{sHEAD}, 2")
    e(f"s_add_u32 s{sHEAD}, s{sHEAD}, s{sW}")
    e(f"v_lshlrev_b32 v6, 4, v{vG}")
    e("s_waitcnt lgkmcnt(0)")
    srd(e, 16, 12, WS_USED)
    KP = 16
    ZZ = 144
    PQ = 160
    e(f"s_lshl_b32 s{sT0}, s{sHEAD}, 15")
    e(f"s_add_u32 s{sT0}, s{sT0}, {WS_KVP}")
    for tb in range(16):
        if tb % 2 == 0 and tb: e(f"s_add_u32 s{sT0}, s{sT0}, 4096")
        for sg in range(2):
            b = KP + 8*tb + 4*sg
            e(f"buffer_load_dwordx4 v[{b}:{b+3}], v{vL16}, s[16:19], s{sT0} offen offset:{(tb % 2)*2048 + sg*1024}")
    e(f"v_lshl_add_u32 v6, v{vC}, 7, v6")
    e(f"s_lshl_b32 s3, s{sHEAD}, 11")
    e(f"s_add_u32 s3, s3, {WS_ZP}")
    e(f"buffer_load_dwordx4 v[{ZZ}:{ZZ+3}], v6, s[16:19], s3 offen")
    e(f"buffer_load_dwordx4 v[{ZZ+4}:{ZZ+7}], v6, s[16:19], s3 offen offset:64")
    e(f"s_lshl_b32 s{sT0}, s{sTQ}, 19")
    e(f"s_lshl_b32 s3, s{sHEAD}, 10")
    e(f"s_add_u32 s{sT0}, s{sT0}, s3")
    e(f"s_add_u32 s{sT0}, s{sT0}, {WS_PHQ}")
    for t in range(16):
        e(f"s_add_u32 s3, s{sT0}, {t*32768}")
        e(f"buffer_load_dwordx4 v[{PQ+4*t}:{PQ+4*t+3}], v{vL16}, s[16:19], s3 offen")
    for tb in range(1, 16):
        e(f"s_waitcnt vmcnt({18 + 2*(15-tb)})")
        for i in range(8): e(f"v_add_f32 v{KP+i}, v{KP+i}, v{KP+8*tb+i}")
    e("s_waitcnt vmcnt(16)")
    for sh in (8, 4, 2, 1):
        for i in range(8):
            e(f"v_add_f32_dpp v{ZZ+i}, v{ZZ+i}, v{ZZ+i} row_ror:{sh} row_mask:0xf bank_mask:0xf")
    KA, ZA = 8, 12
    for i in range(4):
        e(f"v_cvt_pk_bf16_f32 v{KA+i}, v{KP+2*i}, v{KP+2*i+1}")
        e(f"v_cvt_pk_bf16_f32 v{ZA+i}, v{ZZ+2*i}, v{ZZ+2*i+1}")
    stamp_mid(e, 0)
    e(f"s_lshl_b32 s{sT0}, s{sTQ}, 18")
    e(f"s_lshr_b32 s3, s{sHEAD}, 1")
    e(f"s_lshl_b32 s3, s3, 10")
    e(f"s_add_u32 s{sT0}, s{sT0}, s3")
    e(f"s_and_b32 s3, s{sHEAD}, 1")
    e(f"s_lshl_b32 s3, s3, 3")
    e(f"s_add_u32 s{sT0}, s{sT0}, s3")
    e(f"s_add_u32 s{sT0}, s{sT0}, {WS_O}")
    NUM = 16
    for t in range(16):
        e(f"s_waitcnt vmcnt({15-t})")
        b = f"v[{PQ+4*t}:{PQ+4*t+3}]"
        e(f"v_mfma_f32_16x16x32_bf16 v[{NUM+8*t}:{NUM+8*t+3}], v[{KA}:{KA+3}], {b}, 0")
        e(f"v_mfma_f32_16x16x32_bf16 v[{NUM+8*t+4}:{NUM+8*t+7}], v[{ZA}:{ZA+3}], {b}, 0")
    for t in range(16):
        n = NUM + 8*t
        e(f"v_add_f32 v{n+4}, {f32(1e-6)}, v{n+4}")
        e(f"v_rcp_f32 v{n+4}, v{n+4}")
        e(f"s_add_u32 s3, s{sT0}, {t*16384}")
        for r in range(4): e(f"v_mul_f32 v{n+r}, v{n+r}, v{n+4}")
        e(f"v_cvt_pk_bf16_f32 v{n+6}, v{n}, v{n+1}")
        e(f"v_cvt_pk_bf16_f32 v{n+7}, v{n+2}, v{n+3}")
        e(f"buffer_store_dwordx2 v[{n+6}:{n+7}], v{vL16}, s[16:19], s3 offen")
    stamp_mid(e, 1)
    stamp_end(e, 1, 12)
    e.label(f"{k}_done")
    e("s_endpgm")
    return k, 240, 256, K2_LDS, 256

K3_RED = 65536
K3_LDS = 131072
def gen_k3(e):
    k = "k3_kernel"
    e.raw(f".globl {k}\n.p2align 8\n.type {k},@function\n{k}:")
    stamp_start(e)
    e("s_cmp_ge_u32 s2, 256")
    e(f"s_cbranch_scc1 {k}_done")
    e("s_load_dwordx2 s[4:5], s[0:1], 0")
    e("s_load_dwordx2 s[6:7], s[0:1], 24")
    e("s_load_dwordx4 s[8:11], s[0:1], 56")
    e("s_load_dwordx2 s[14:15], s[0:1], 72")
    e("s_load_dwordx2 s[12:13], s[0:1], 88")
    sW, sSQ, sDQ, sROT, sJ, sFO, sTO, sFB, sTB, sT0, sT1, sM0, sIT = range(48, 61)
    e("v_and_b32 v1, 63, v0")
    e("v_lshrrev_b32 v2, 6, v0")
    e(f"v_readfirstlane_b32 s{sW}, v2")
    e(f"s_and_b32 s{sSQ}, s2, 7")
    e(f"s_lshl_b32 s{sSQ}, s{sSQ}, 2")
    e(f"s_lshr_b32 s3, s2, 6")
    e(f"s_add_u32 s{sSQ}, s{sSQ}, s3")
    e(f"s_lshl_b32 s{sROT}, s3, 2")
    e(f"s_bfe_u32 s{sDQ}, s2, {3 | (3 << 16)}")
    e(f"s_lshl_b32 s3, s{sDQ}, 1")
    e(f"s_add_u32 s{sROT}, s{sROT}, s3")
    vG, vC, vL16, vR4, vC4 = 3, 4, 5, 6, 7
    e(f"v_lshrrev_b32 v{vG}, 4, v1")
    e(f"v_and_b32 v{vC}, 15, v1")
    e(f"v_lshlrev_b32 v{vL16}, 4, v1")
    e(f"v_bfe_u32 v{vR4}, v1, 2, 2")
    e(f"v_and_b32 v{vC4}, 3, v1")
    vFO, vTD, vTR = 8, 12, 16
    vT = 20
    vX, vB2 = 24, 32
    vXO = 33
    YR, SR = 64, 128
    RING = 144
    TRB = 208
    e(f"s_lshl_b32 s{sM0}, s{sW}, 14")
    e(f"v_lshlrev_b32 v{vT}, 1, v{vG}")
    e(f"v_and_b32 v{vT+1}, 7, v1")
    e(f"v_xor_b32 v{vT}, v{vT}, v{vT+1}")
    e(f"v_lshlrev_b32 v{vT}, 4, v{vT}")
    e(f"v_lshrrev_b32 v{vT+1}, 3, v1")
    e(f"v_lshl_add_u32 v{vT+2}, v{vG}, 2, v{vR4}")
    e(f"v_bfe_u32 v{vT+3}, v{vT+2}, 1, 2")
    e(f"v_lshlrev_b32 v{vT+2}, 7, v{vT+2}")
    e(f"v_lshl_add_u32 v{vT+2}, v2, 14, v{vT+2}")
    e(f"v_lshl_add_u32 v{vXO}, v2, 4, v{vC}")
    e(f"v_lshlrev_b32 v{vB2}, 1, v{vXO}")
    e(f"v_lshlrev_b32 v{vXO}, 10, v{vXO}")
    e(f"v_lshl_add_u32 v{vXO}, v{vG}, 4, v{vXO}")
    sXO = 62
    e(f"s_lshl_b32 s{sXO}, s{sSQ}, 16")
    e(f"s_lshl_b32 s3, s{sDQ}, 7")
    e(f"s_add_u32 s{sXO}, s{sXO}, s3")
    e("s_waitcnt lgkmcnt(0)")
    srd(e, 24, 4, S*D*2)
    srd(e, 28, 14, S*D*2)
    srd(e, 32, 10, S*2)
    e(f"s_cmp_eq_u32 s{sW}, 3")
    e(f"s_cbranch_scc1 {k}_g4")

    def body(g4):
        lab = f"{k}_g4l" if g4 else f"{k}_g3l"
        pitch = 1024 if g4 else 4096
        def acc(q, j):
            if g4 and q == 0: return SR + 4*j
            return YR + 16*q + 4*j
        if g4:
            srd(e, 16, 12, 128*16*1024, WS_O)
            srd(e, 20, 6, D*D*2)
            for q in range(4):
                e(f"v_add_u32 v{vFO+q}, {(q ^ 3)*16384}, v{vL16}")
            e(f"s_lshl_b32 s{sFB}, s{sSQ}, 16")
            e(f"s_lshl_b32 s{sTB}, s{sDQ}, 7")
            e(f"v_lshlrev_b32 v{vT+3}, 1, v{vT+3}")
            e(f"v_xor_b32 v{vT+3}, v{vT+3}, v{vC4}")
            e(f"v_lshl_add_u32 v{vTR}, v{vT+3}, 4, v{vT+2}")
            e(f"v_xor_b32 v{vTR+1}, 64, v{vTR}")
        else:
            srd(e, 16, 12, 32*43*1024, WS_U)
            srd(e, 20, 8, F*S*2)
            for j in range(4):
                e(f"v_add_u32 v{vFO+j}, {j*43*1024}, v{vL16}")
            e(f"s_mul_i32 s{sFB}, s{sDQ}, {4*43*1024}")
            e(f"s_lshl_b32 s{sTB}, s{sSQ}, 7")
            e(f"v_xor_b32 v{vT+3}, v{vT+3}, v2")
            e(f"v_lshl_add_u32 v{vT+2}, v{vC4}, 3, v{vT+2}")
            e(f"v_lshl_add_u32 v{vTR}, v{vT+3}, 5, v{vT+2}")
            for q in range(1, 4):
                e(f"v_xor_b32 v{vTR+q}, {q*32}, v{vTR}")
        e(f"s_mov_b32 s3, {pitch}")
        e(f"v_mad_u32_u24 v{vTD}, v{vT+1}, s3, v{vT}")
        for n in range(1, 4):
            e(f"v_add_u32 v{vTD+n}, {n*(8*pitch - 1024)}, v{vTD}")
        for q in range(4):
            for j in range(4):
                for r in range(4): e(f"v_mov_b32 v{acc(q, j)+r}, 0")
        def loads(slot):
            pre = [f"s_add_u32 s3, s{sJ}, s{sROT}", "s_and_b32 s3, s3, 15", f"s_add_u32 s{sJ}, s{sJ}, 1"]
            if g4:
                pre += [f"s_lshl_b32 s{sFO}, s3, 10", f"s_add_u32 s{sFO}, s{sFO}, s{sFB}",
                        f"s_lshl_b32 s{sTO}, s3, 15", f"s_add_u32 s{sTO}, s{sTO}, s{sTB}"]
            else:
                pre += ["s_mul_i32 s3, s3, 3", f"s_add_u32 s3, s3, s{sW}",
                        f"s_lshl_b32 s{sFO}, s3, 10", f"s_add_u32 s{sFO}, s{sFO}, s{sFB}",
                        f"s_lshl_b32 s{sTO}, s3, 17", f"s_add_u32 s{sTO}, s{sTO}, s{sTB}",
                        "s_cmp_lt_u32 s3, 43", f"s_cselect_b32 s{sFO}, s{sFO}, {OOB}"]
            pre += [f"s_add_u32 m0, s{sM0}, {slot*4096}"]
            L = []
            for n in range(4):
                L.append([f"buffer_load_dwordx4 v{vTD+n}, s[20:23], s{sTO} offen offset:{n*1024} lds"])
            for j in range(4):
                b = RING + 16*slot + 4*j
                L.append([f"buffer_load_dwordx4 v[{b}:{b+3}], v{vFO+j}, s[16:19], s{sFO} offen"])
            L[0] = pre + L[0]
            return L
        def trreads(slot, buf):
            L = []
            for i in range(4):
                for h in range(2):
                    b = TRB + 16*buf + 4*i + 2*h
                    if g4: L.append(f"ds_read_b64_tr_b16 v[{b}:{b+1}], v{vTR + (i >> 1)} offset:{slot*4096 + h*2048 + (i & 1)*8}")
                    else:  L.append(f"ds_read_b64_tr_b16 v[{b}:{b+1}], v{vTR + i} offset:{slot*4096 + h*2048}")
            return L
        e(f"s_mov_b32 s{sJ}, 0")
        for sl in range(3):
            for g in loads(sl):
                for t in g: e(t)
        def step(slot, vm, nxt):
            e(f"s_waitcnt vmcnt({vm})")
            for t in trreads(slot, 0): e(t)
            G = loads((slot + 3) % 4) if nxt else []
            for _ in range(2):
                if G:
                    for t in G.pop(0): e(t)
            n = 0
            for i in range(4):
                e(f"s_waitcnt lgkmcnt({2*(3-i)})")
                for j in range(4):
                    tr = f"v[{TRB+4*i}:{TRB+4*i+3}]"; fr = f"v[{RING+16*slot+4*j}:{RING+16*slot+4*j+3}]"
                    if g4:
                        c_ = acc(j, i); e(f"v_mfma_f32_16x16x32_bf16 v[{c_}:{c_+3}], {tr}, {fr}, v[{c_}:{c_+3}]")
                    else:
                        c_ = acc(i, j); e(f"v_mfma_f32_16x16x32_bf16 v[{c_}:{c_+3}], {fr}, {tr}, v[{c_}:{c_+3}]")
                    if n % 2 == 1 and G:
                        for t in G.pop(0): e(t)
                    n += 1
        e(f"s_mov_b32 s{sIT}, 0")
        e.label(lab)
        for sl in range(4): step(sl, 16, True)
        e(f"s_add_u32 s{sIT}, s{sIT}, 1")
        e(f"s_cmp_lt_u32 s{sIT}, 3")
        e(f"s_cbranch_scc1 {lab}")
        step(0, 16, True)
        e(f"buffer_load_dwordx4 v[{vX}:{vX+3}], v{vXO}, s[24:27], s{sXO} offen")
        e(f"buffer_load_dwordx4 v[{vX+4}:{vX+7}], v{vXO}, s[24:27], s{sXO} offen offset:64")
        e(f"s_lshl_b32 s3, s{sSQ}, 7")
        e(f"buffer_load_ushort v{vB2}, v{vB2}, s[32:35], s3 offen")
        step(1, 19, False)
        step(2, 11, False)
        step(3, 3, False)
        stamp_mid(e, 0)
        e(f"v_lshl_add_u32 v{vT}, v2, 12, v{vL16}")
        e(f"v_lshl_add_u32 v{vT}, v2, 14, v{vT}")
        e(f"v_add_u32 v{vT}, {K3_RED}, v{vT}")
        for q in range(1, 4):
            e(f"v_xor_b32 v{vT+q}, {q*16384}, v{vT}")
        for q in range(1, 4):
            for j in range(4):
                c_ = acc(q, j)
                e(f"ds_write_b128 v{vT+q}, v[{c_}:{c_+3}] offset:{j*1024}")
        e(f"v_lshl_add_u32 v{vT}, v2, 14, v{vL16}")
        e(f"v_add_u32 v{vT}, {K3_RED}, v{vT}")
        if not g4:
            e(f"s_add_u32 s3, s{sW}, 1\ns_cmp_eq_u32 s3, 3\ns_cselect_b32 s3, 0, s3\ns_lshl_b32 s{sT0}, s3, 12")
            e(f"s_add_u32 s3, s3, 1\ns_cmp_eq_u32 s3, 3\ns_cselect_b32 s3, 0, s3\ns_lshl_b32 s{sT1}, s3, 12")
            e(f"v_add_u32 v{vFO}, s{sT0}, v{vT}")
            e(f"v_add_u32 v{vFO+1}, s{sT1}, v{vT}")
        e("s_waitcnt lgkmcnt(0)")
        e("s_barrier")
        if g4:
            for j in range(4): e(f"ds_read_b128 v[{YR+4*j}:{YR+4*j+3}], v{vT} offset:{j*1024}")
            for q in range(2):
                for j in range(4): e(f"ds_read_b128 v[{RING+16*q+4*j}:{RING+16*q+4*j+3}], v{vT} offset:{(q+1)*4096 + j*1024}")
        else:
            for j in range(4): e(f"ds_read_b128 v[{SR+4*j}:{SR+4*j+3}], v{vT} offset:{3*4096 + j*1024}")
            for q in range(2):
                for j in range(4): e(f"ds_read_b128 v[{RING+16*q+4*j}:{RING+16*q+4*j+3}], v{vFO+q} offset:{j*1024}")
    body(False)
    e(f"s_branch {k}_epi")
    e.label(f"{k}_g4")
    body(True)
    e.label(f"{k}_epi")
    e("s_waitcnt vmcnt(0)")
    e(f"v_lshlrev_b32 v{vB2}, 16, v{vB2}")
    e("s_waitcnt lgkmcnt(4)")
    for i in range(16): e(f"v_add_f32 v{YR+i}, v{YR+i}, v{RING+i}")
    e("s_waitcnt lgkmcnt(0)")
    for i in range(16): e(f"v_add_f32 v{RING+16+i}, v{RING+16+i}, v{vB2}")
    for i in range(16): e(f"v_add_f32 v{YR+i}, v{YR+i}, v{RING+16+i}")
    T = RING
    e(f"s_mov_b32 s3, {f32(-LOG2E)}")
    for i in range(16): e(f"v_mul_f32 v{T+i}, s3, v{YR+i}")
    for i in range(16): e(f"v_exp_f32 v{T+i}, v{T+i}")
    for i in range(16): e(f"v_add_f32 v{T+i}, 1.0, v{T+i}")
    for i in range(16): e(f"v_rcp_f32 v{T+i}, v{T+i}")
    for i in range(16): e(f"v_mul_f32 v{YR+i}, v{YR+i}, v{SR+i}")
    for i in range(8):
        e(f"v_lshlrev_b32 v{T+16+2*i}, 16, v{vX+i}")
        e(f"v_and_b32 v{T+16+2*i+1}, 0xffff0000, v{vX+i}")
    for i in range(16): e(f"v_fma_f32 v{YR+i}, v{YR+i}, v{T+i}, v{T+16+i}")
    for i in range(8): e(f"v_cvt_pk_bf16_f32 v{vX+i}, v{YR+2*i}, v{YR+2*i+1}")
    e(f"buffer_store_dwordx4 v[{vX}:{vX+3}], v{vXO}, s[28:31], s{sXO} offen")
    e(f"buffer_store_dwordx4 v[{vX+4}:{vX+7}], v{vXO}, s[28:31], s{sXO} offen offset:64")
    stamp_mid(e, 1)
    stamp_end(e, 2, 12)
    e.label(f"{k}_done")
    e("s_endpgm")
    return k, 256, 256, K3_LDS, 256

def kd(name, vgpr):
    return f""".p2align 6
.amdhsa_kernel {name}
  .amdhsa_next_free_vgpr {vgpr}
  .amdhsa_next_free_sgpr 102
  .amdhsa_accum_offset {min(256, (vgpr+3)//4*4)}
  .amdhsa_group_segment_fixed_size 0
  .amdhsa_kernarg_size 96
  .amdhsa_user_sgpr_count 2
  .amdhsa_user_sgpr_kernarg_segment_ptr 1
  .amdhsa_system_sgpr_workgroup_id_x 1
.end_amdhsa_kernel"""

def build(path, stamps=False):
    global STAMPS
    STAMPS = stamps
    e = Emitter()
    ks = [g(e) for g in (gen_k1, gen_k2, gen_k3)]
    hdr = open(f"cdna_kernels/{NAME}.s.ref").read().split("; Override")[0]
    s = hdr + "".join(f"; @launch kernel={k} grid=({g},1,1) block=({b},1,1) lds={l}\n" for k, g, b, l, v in ks)
    s += '.amdgcn_target "amdgcn-amd-amdhsa--gfx950"\n.text\n' + e.text() + '\n.section .rodata,"a"\n' + "\n".join(kd(k, v) for k, g, b, l, v in ks) + "\n"
    open(path, "w").write(s)

if __name__ == "__main__":
    build(sys.argv[1], stamps=(sys.argv[2] if len(sys.argv) > 2 else False))
```
